```python
import torch

def _softmax(x, axis=-1):
    return torch.softmax(x, dim=axis)

def _gelu(x):
    return torch.nn.functional.gelu(x, approximate='tanh')

def _silu(x):
    return torch.nn.functional.silu(x)

def _sigmoid(x):
    return torch.sigmoid(x)

def _layernorm(x, axis=-1, eps=1e-05):
    m = x.mean(dim=axis, keepdim=True)
    v = x.var(dim=axis, keepdim=True, unbiased=False)
    return (x - m) / torch.sqrt(v + eps)

def _scatter_add(tgt, idx, src, axis=0):
    return tgt.clone().index_add_(axis, idx, src)

def _segment_sum(src, seg, n):
    out = torch.zeros((n,) + src.shape[1:], dtype=src.dtype)
    return out.index_add_(0, seg, src)

def _pad(x, pw):
    flat = tuple((v for pair in reversed(pw) for v in pair))
    return torch.nn.functional.pad(x, flat)
kernel_name = 'standalone__autoregressive_conv_wavenet__speech'

def setup_inputs():

    _w = lambda a: (lambda t: t.to(torch.bfloat16) if t.is_floating_point() else t)(torch.as_tensor(a))
    B, T, D, K = (2, 16000, 144, 5)
    return {'x': _w((lambda *s: torch.randn(*s, dtype=torch.bfloat16) * 0.1)(B, T, D)), 'w': _w((lambda *s: torch.randn(*s, dtype=torch.bfloat16) * 0.1)(K, D, 2 * D)), 'w_o': _w((lambda *s: torch.randn(*s, dtype=torch.bfloat16) * 0.05)(D, D))}

def reference(x, w, w_o):
    B, T, D = x.shape
    K = w.shape[0]
    dil = 2
    pad = (K - 1) * dil
    xp = _pad(x, ((0, 0), (pad, 0), (0, 0)))
    h = torch.einsum('btc,cd->btd', xp[:, pad:pad + T, :], w[0])
    for i in range(1, K):
        off = pad - i * dil
        h = h + torch.einsum('btc,cd->btd', xp[:, off:off + T, :], w[i])
    f = h[..., :D].clone()
    g = h[..., D:].clone()
    z = torch.tanh(f) * _sigmoid(g)
    return z @ w_o
```

```python
KNAME = "standalone__autoregressive_conv_wavenet__speech_kernel"

HEADER = """; Kernarg layout for this problem (48 bytes, ptrs only, base s[0:1]):
"""

class Asm:
    def __init__(self):
        self.L = []
    def __call__(self, s):
        for ln in s.split("\n"):
            self.L.append(("    " + ln.strip()) if not ln.strip().endswith(":") else ln.strip())
    def c(self, s):
        self.L.append("    ; " + s)
    def text(self):
        return "\n".join(self.L) + "\n"

def wrap(body, grid, block, lds, nvgpr, nsgpr=96, accum=None):
    accum = accum if accum is not None else ((nvgpr + 3) // 4) * 4
    s = HEADER
    s += f"; @launch grid=({grid},1,1) block=({block},1,1) lds={lds}\n"
    s += '.amdgcn_target "amdgcn-amd-amdhsa--gfx950"\n.text\n'
    s += f".globl {KNAME}\n.p2align 8\n.type {KNAME},@function\n{KNAME}:\n"
    s += body
    s += '.section .rodata,"a"\n.p2align 6\n'
    s += f".amdhsa_kernel {KNAME}\n"
    s += f"  .amdhsa_next_free_vgpr {nvgpr}\n  .amdhsa_next_free_sgpr {nsgpr}\n  .amdhsa_accum_offset {accum}\n"
    s += "  .amdhsa_group_segment_fixed_size 0\n  .amdhsa_kernarg_size 48\n  .amdhsa_user_sgpr_count 2\n"
    s += "  .amdhsa_user_sgpr_kernarg_segment_ptr 1\n  .amdhsa_system_sgpr_workgroup_id_x 1\n"
    s += ".end_amdhsa_kernel\n"
    return s

def vr(a, n=1):
    return f"v{a}" if n == 1 else f"v[{a}:{a+n-1}]"
def sr(a, n=1):
    return f"s{a}" if n == 1 else f"s[{a}:{a+n-1}]"
```

```python
import sys
from common import *

XREG = 0
XCG = 13056
RING = 39168
SLOT = 27648
WO_LDS = RING + 3 * SLOT
LDS_TOTAL = WO_LDS + 41472

def gen(stamps=False, rot=True):
    a = Asm()
    ACC = 0
    AF = 144
    BF = 180
    XA = 188
    WA0, WA1 = 193, 194
    WOA = 195
    OA = 196
    T = 198
    ZF = 214
    STV = 224
    TID = 226
    stamp_n = [0]
    def stamp():
        if not stamps: return
        i = stamp_n[0]; stamp_n[0] += 1
        a(f"s_memtime s[60:61]")
        a(f"s_memrealtime s[62:63]")
        a("s_waitcnt lgkmcnt(0)")
        a(f"v_writelane_b32 v{STV}, s60, {i}")
        a(f"v_writelane_b32 v{STV+1}, s62, {i}")
    def stamp_store():
        if not stamps: return
        a("s_lshl_b32 s60, s2, 3")
        a("s_add_u32 s60, s60, s36")
        a("s_lshl_b32 s60, s60, 9")
        a(f"v_and_b32 v{T}, 63, v{TID}")
        a(f"v_lshlrev_b32 v{T}, 2, v{T}")
        a(f"v_add_u32 v{T}, s60, v{T}")
        a(f"buffer_store_dword v{STV}, v{T}, s[32:35], 0 offen")
        a(f"buffer_store_dword v{STV+1}, v{T}, s[32:35], 0 offen offset:256")

    a("s_cmp_ge_u32 s2, 250")
    a("s_cbranch_scc1 L_end")
    a("s_load_dwordx8 s[4:11], s[0:1], 0")
    if stamps:
        a("s_load_dwordx2 s[14:15], s[0:1], 40")
    a(f"v_mov_b32 v{TID}, v0")
    if stamps:
        a(f"v_mov_b32 v{STV}, 0\nv_mov_b32 v{STV+1}, 0")
    a(f"v_lshrrev_b32 v{T}, 6, v0")
    a(f"v_and_b32 v{T+1}, 63, v0")
    a(f"v_readfirstlane_b32 s36, v{T}")
    if rot:
        a("s_lshr_b32 s39, s2, 3")
        a("s_mul_i32 s40, s39, 4370")
        a("s_lshr_b32 s40, s40, 16")
        a("s_mul_i32 s40, s40, 15")
        a("s_sub_u32 s39, s39, s40")
        a("s_mul_i32 s37, s39, 13108")
        a("s_lshr_b32 s37, s37, 16")
        a("s_mul_i32 s40, s37, 5")
        a("s_sub_u32 s38, s39, s40")
    else:
        a("s_mov_b32 s37, 0\ns_mov_b32 s38, 0")
    stamp()
    a("s_waitcnt lgkmcnt(0)")
    a("s_mov_b32 s16, s4\ns_mov_b32 s17, s5\ns_mov_b32 s18, 9216000\ns_mov_b32 s19, 0x20000")
    a("s_mov_b32 s20, s6\ns_mov_b32 s21, s7\ns_mov_b32 s22, 414720\ns_mov_b32 s23, 0x20000")
    a("s_mov_b32 s24, s8\ns_mov_b32 s25, s9\ns_mov_b32 s26, 41472\ns_mov_b32 s27, 0x20000")
    a("s_mov_b32 s28, s10\ns_mov_b32 s29, s11\ns_mov_b32 s30, 9216000\ns_mov_b32 s31, 0x20000")
    if stamps:
        a("s_mov_b32 s32, s14\ns_mov_b32 s33, s15\ns_mov_b32 s34, 0x1000000\ns_mov_b32 s35, 0x20000")
    a("s_cmp_ge_u32 s36, 4")
    a("s_cbranch_scc1 L_loader")

    LANE = T + 1
    XV = T + 4
    a("s_mul_i32 s40, s36, 34")
    a("s_lshl_b32 s41, s2, 7")
    a("s_sub_u32 s41, s41, 8")
    a("s_mul_i32 s41, s41, 288")
    a("s_cmp_eq_u32 s2, 0")
    a("s_cselect_b32 s42, 8, 0")
    a("s_cmp_eq_u32 s2, 125")
    a("s_cselect_b32 s42, 8, s42")
    a("s_mov_b32 s43, 0x7fff0000")
    a("s_movk_i32 s44, 288")
    a(f"v_mov_b32 v{T+10}, s43")
    for n in range(4):
        u, q, r_, c_ = T+2, T+3, T+8, T+9
        a(f"v_add_u32 v{u}, {64*n}, v{LANE}")
        a(f"v_mul_u32_u24 v{q}, 43691, v{u}")
        a(f"v_lshrrev_b32 v{q}, 18, v{q}")
        a(f"v_mul_u32_u24 v{c_}, 6, v{q}")
        a(f"v_sub_u32 v{c_}, v{u}, v{c_}")
        a(f"v_add_u32 v{r_}, s40, v{q}")
        a(f"v_bfe_u32 v{q}, v{r_}, 3, 1")
        a(f"v_xor_b32 v{c_}, v{c_}, v{q}")
        a(f"v_lshlrev_b32 v{c_}, 4, v{c_}")
        a(f"v_mad_u32_u24 v{c_}, v{r_}, s44, v{c_}")
        a(f"v_add_u32 v{XV+n}, s41, v{c_}")
        if n == 0:
            a(f"v_cmp_gt_u32 vcc, s42, v{r_}")
            a("s_nop 1")
            a(f"v_cndmask_b32 v{XV+n}, v{XV+n}, v{T+10}, vcc")
    for j in range(3):
        a(f"s_add_u32 s{45+j}, s37, {j}")
        a(f"s_cmp_ge_u32 s{45+j}, 3")
        a(f"s_cselect_b32 s48, 3, 0")
        a(f"s_sub_u32 s{45+j}, s{45+j}, s48")
        a(f"s_mul_i32 s{45+j}, s{45+j}, 96")
    a("s_mul_i32 s48, s36, 3264")
    for j in range(3):
        for n in range(4):
            a(f"s_add_u32 m0, s48, {XREG + j*XCG + n*1024}")
            if n == 3:
                a("s_mov_b64 exec, 0xfff")
            else:
                a("s_nop 0")
            a(f"buffer_load_dwordx4 v{XV+n}, s[16:19], s{45+j} offen lds")
            if n == 3:
                a("s_mov_b64 exec, -1")
    stamp()
    H, TT = T+2, T+3
    a(f"v_lshrrev_b32 v{H}, 5, v{LANE}")
    a(f"v_and_b32 v{TT}, 31, v{LANE}")
    a("s_lshl_b32 s40, s36, 5")
    a("s_add_u32 s40, s40, 8")
    a("s_movk_i32 s44, 96")
    for i in range(5):
        a(f"s_add_u32 s41, s38, {i}")
        a("s_cmp_ge_u32 s41, 5")
        a("s_cselect_b32 s42, 5, 0")
        a("s_sub_u32 s41, s41, s42")
        a("s_lshl_b32 s41, s41, 1")
        a("s_sub_u32 s41, s40, s41")
        a(f"v_add_u32 v{T+8}, s41, v{TT}")
        a(f"v_bfe_u32 v{T+9}, v{T+8}, 3, 1")
        a(f"v_xor_b32 v{T+9}, v{T+9}, v{H}")
        a(f"v_lshlrev_b32 v{T+9}, 4, v{T+9}")
        a(f"v_mad_u32_u24 v{XA+i}, v{T+8}, s44, v{T+9}")
    a(f"v_bfe_u32 v{T+8}, v{LANE}, 2, 2")
    a(f"v_lshl_add_u32 v{T+8}, v{H}, 3, v{T+8}")
    a("s_movk_i32 s44, 576")
    a(f"v_mul_u32_u24 v{T+8}, s44, v{T+8}")
    a(f"v_bfe_u32 v{T+9}, v{LANE}, 4, 1")
    a("s_movk_i32 s44, 288")
    a(f"v_mad_u32_u24 v{T+8}, v{T+9}, s44, v{T+8}")
    a(f"v_and_b32 v{T+10}, 3, v{LANE}")
    a(f"v_lshl_add_u32 v{T+8}, v{T+10}, 3, v{T+8}")
    a(f"v_add_u32 v{WA0}, {RING}, v{T+8}")
    a(f"v_add_u32 v{WA1}, {RING + 2*SLOT}, v{T+8}")
    a(f"v_bfe_u32 v{T+8}, v{LANE}, 2, 2")
    a(f"v_lshl_add_u32 v{T+8}, v{H}, 2, v{T+8}")
    a(f"v_mul_u32_u24 v{T+8}, s44, v{T+8}")
    a(f"v_lshl_add_u32 v{T+8}, v{T+9}, 7, v{T+8}")
    a(f"v_and_b32 v{T+10}, 1, v{LANE}")
    a(f"v_lshl_add_u32 v{T+8}, v{T+10}, 4, v{T+8}")
    a(f"v_bfe_u32 v{T+10}, v{LANE}, 1, 1")
    a(f"v_lshl_add_u32 v{T+8}, v{T+10}, 3, v{T+8}")
    a(f"v_add_u32 v{WOA}, {WO_LDS}, v{T+8}")
    a("s_lshl_b32 s40, s2, 7")
    a("s_lshl_b32 s41, s36, 5")
    a("s_add_u32 s40, s40, s41")
    a(f"v_add_u32 v{T+8}, s40, v{TT}")
    a(f"v_lshlrev_b32 v{T+9}, 4, v{H}")
    a(f"v_mad_u32_u24 v{OA}, v{T+8}, s44, v{T+9}")

    q = []
    bound = [0]
    def rd(instr, tag):
        a(instr); q.append(tag)
    def need(tags):
        idx = -1
        for i, t in enumerate(q):
            if t in tags: idx = i
        if idx < 0: return
        n = len(q) - 1 - idx
        a(f"s_waitcnt lgkmcnt({min(n,15)})")
        keep = min(n, 15)
        del q[:len(q)-keep]
    def readA(k, j):
        s, ks = divmod(k, 3)
        slot = s % 4
        base = WA0 if slot < 2 else WA1
        off = (slot % 2) * SLOT + ks * 9216 + j * 32
        r = AF + 4*j
        rd(f"ds_read_b64_tr_b16 v[{r}:{r+1}], v{base} offset:{off}", ("A", k, j))
        rd(f"ds_read_b64_tr_b16 v[{r+2}:{r+3}], v{base} offset:{off+2304}", ("A", k, j))
    def readB(k):
        s, ks = divmod(k, 3)
        cgj, ti = divmod(s, 5)
        r = BF + 4*(k % 2)
        rd(f"ds_read_b128 v[{r}:{r+3}], v{XA+ti} offset:{XREG + cgj*XCG + ks*32}", ("B", k))

    a("s_waitcnt vmcnt(8)")
    a("s_barrier")
    stamp()
    readB(0)
    for j in range(9): readA(0, j)
    for k in range(45):
        nxt = k + 1
        newstage = (nxt % 3 == 0) and nxt < 45
        pending = []
        for j in range(9):
            need({("A", k, j), ("B", k)})
            acc = ACC + 16*j
            cop = "0" if k == 0 else f"v[{acc}:{acc+15}]"
            br = BF + 4*(k % 2)
            a(f"v_mfma_f32_32x32x16_bf16 v[{acc}:{acc+15}], v[{AF+4*j}:{AF+4*j+3}], v[{br}:{br+3}], {cop}")
            if nxt < 45:
                pending.append(j)
                if newstage and j < 2:
                    continue
                if newstage and j == 2:
                    s = nxt // 3
                    if s == 5: a("s_waitcnt vmcnt(4)")
                    if s == 10: a("s_waitcnt vmcnt(0)")
                    a("s_waitcnt lgkmcnt(0)"); q.clear()
                    a("s_barrier")
                if (j == 0 and not newstage) or (newstage and j == 2):
                    readB(nxt)
                for _ in range(2):
                    if pending:
                        readA(nxt, pending.pop(0))
        assert not pending
    stamp()
    a("s_nop 7")
    a("s_nop 7")
    a("s_mov_b32 s40, 0x4038aa3b")
    a("s_mov_b32 s41, 0x4038aa3b")
    a("s_mov_b32 s42, 0xbfb8aa3b")
    a("s_mov_b32 s43, 0xbfb8aa3b")
    a("s_mov_b32 s44, 0x42800000")
    Z = AF
    for j in range(9):
        f = ACC + 16*j; g = f + 8
        for r in range(0, 8, 2):
            a(f"v_pk_mul_f32 v[{f+r}:{f+r+1}], v[{f+r}:{f+r+1}], s[40:41]")
            a(f"v_pk_mul_f32 v[{g+r}:{g+r+1}], v[{g+r}:{g+r+1}], s[42:43]")
        for r in range(8):
            a(f"v_min_f32 v{f+r}, s44, v{f+r}")
        for r in range(8):
            a(f"v_exp_f32 v{f+r}, v{f+r}")
            a(f"v_exp_f32 v{g+r}, v{g+r}")
        for r in range(0, 8, 2):
            a(f"v_pk_add_f32 v[{T+r}:{T+r+1}], v[{f+r}:{f+r+1}], 1.0 op_sel_hi:[1,0]")
        for r in range(0, 8, 2):
            a(f"v_pk_fma_f32 v[{g+r}:{g+r+1}], v[{T+r}:{T+r+1}], v[{g+r}:{g+r+1}], v[{T+r}:{T+r+1}]")
        for r in range(0, 8, 2):
            a(f"v_pk_add_f32 v[{f+r}:{f+r+1}], v[{f+r}:{f+r+1}], -1.0 op_sel_hi:[1,0]")
        for r in range(8):
            a(f"v_rcp_f32 v{g+r}, v{g+r}")
        a("s_nop 0")
        for r in range(0, 8, 2):
            a(f"v_pk_mul_f32 v[{f+r}:{f+r+1}], v[{f+r}:{f+r+1}], v[{g+r}:{g+r+1}]")
        for r in range(0, 8, 2):
            a(f"v_cvt_pk_bf16_f32 v{Z+4*j+r//2}, v{f+r}, v{f+r+1}")
    stamp()
    a("s_barrier")
    OACC = 0
    OF = 80
    def readO(j, qq):
        r = OF + 4*((j*5+qq) % 10)
        off = j*4608 + (qq*32 if qq < 4 else 256)
        rd(f"ds_read_b64_tr_b16 v[{r}:{r+1}], v{WOA} offset:{off}", ("O", j, qq))
        rd(f"ds_read_b64_tr_b16 v[{r+2}:{r+3}], v{WOA} offset:{off+2304}", ("O", j, qq))
    order = [(j, qq) for j in range(9) for qq in range(5)]
    for i in range(7): readO(*order[i])
    for i, (j, qq) in enumerate(order):
        need({("O", j, qq)})
        acc = OACC + 16*qq
        cop = "0" if j == 0 else f"v[{acc}:{acc+15}]"
        r = OF + 4*((j*5+qq) % 10)
        a(f"v_mfma_f32_32x32x16_bf16 v[{acc}:{acc+15}], v[{r}:{r+3}], v[{Z+4*j}:{Z+4*j+3}], {cop}")
        if i + 7 < len(order): readO(*order[i+7])
    stamp()
    a("s_nop 7")
    a("s_nop 7")
    P = 120
    n = 0
    for qq in range(5):
        for half in range(2 if qq < 4 else 1):
            src = OACC + 16*qq + 8*half
            p = P + 4*n
            for r in range(4):
                a(f"v_cvt_pk_bf16_f32 v{p+r}, v{src+2*r}, v{src+2*r+1}")
            off = (qq*32 + half*128) if qq < 4 else 256
            a(f"buffer_store_dwordx4 v[{p}:{p+3}], v{OA}, s[28:31], 0 offen offset:{off}")
            n += 1
    stamp()
    if stamps:
        a("s_waitcnt vmcnt(0)")
        stamp()
    stamp_store()
    a("s_endpgm")

    a("L_loader:")
    stamp_n[0] = 1
    VD = T + 4
    a(f"v_lshlrev_b32 v{VD}, 4, v{T+1}")
    a("s_sub_u32 s40, s36, 4")
    a("s_mul_i32 s41, s40, 6912")
    for i in range(5):
        a(f"s_add_u32 s{45+i}, s38, {i}")
        a(f"s_cmp_ge_u32 s{45+i}, 5")
        a("s_cselect_b32 s42, 5, 0")
        a(f"s_sub_u32 s{45+i}, s{45+i}, s42")
        a(f"s_mul_i32 s{45+i}, s{45+i}, 82944")
    for j in range(3):
        a(f"s_add_u32 s{50+j}, s37, {j}")
        a(f"s_cmp_ge_u32 s{50+j}, 3")
        a("s_cselect_b32 s42, 3, 0")
        a(f"s_sub_u32 s{50+j}, s{50+j}, s42")
        a(f"s_mul_i32 s{50+j}, s{50+j}, 27648")
        a(f"s_add_u32 s{50+j}, s{50+j}, s41")
    def issue_stage(s):
        cgj, ti = divmod(s, 5)
        a(f"s_add_u32 s43, s{45+ti}, s{50+cgj}")
        a(f"s_add_u32 m0, s41, {RING + (s%4)*SLOT}")
        a("s_add_u32 s44, s43, 4096")
        for n in range(4):
            a(f"buffer_load_dwordx4 v{VD}, s[20:23], s43 offen offset:{n*1024} lds")
        a(f"s_add_u32 m0, s41, {RING + (s%4)*SLOT + 4096}")
        a("s_nop 0")
        for n in range(2):
            a(f"buffer_load_dwordx4 v{VD}, s[20:23], s44 offen offset:{n*1024} lds")
        a("s_mov_b32 exec_hi, 0xffff")
        a(f"buffer_load_dwordx4 v{VD}, s[20:23], s44 offen offset:2048 lds")
        a("s_mov_b32 exec_hi, -1")
    def issue_wo():
        a("s_mul_i32 s43, s40, 10368")
        for b in range(3):
            a(f"s_add_u32 m0, s43, {WO_LDS}")
            a("s_nop 0")
            for n in range(4):
                p = b*4 + n
                if p < 10:
                    a(f"buffer_load_dwordx4 v{VD}, s[24:27], s43 offen offset:{n*1024} lds")
                elif p == 10:
                    a("s_mov_b64 exec, 0xff")
                    a(f"buffer_load_dwordx4 v{VD}, s[24:27], s43 offen offset:{n*1024} lds")
                    a("s_mov_b64 exec, -1")
            a("s_add_u32 s43, s43, 4096")
    for s in range(4): issue_stage(s)
    stamp()
    a("s_waitcnt vmcnt(21)")
    stamp()
    a("s_barrier")
    for s in range(1, 15):
        if s <= 12: a("s_waitcnt vmcnt(14)")
        elif s == 13: a("s_waitcnt vmcnt(18)")
        else: a("s_waitcnt vmcnt(11)")
        stamp()
        a("s_barrier")
        stamp()
        if s + 3 <= 14: issue_stage(s+3)
        elif s == 12: issue_wo()
    a("s_waitcnt vmcnt(0)")
    a("s_barrier")
    stamp_store()
    a("L_end:")
    a("s_endpgm")
    return wrap(a.text(), 250, 512, LDS_TOTAL, 232)

if __name__ == "__main__":
    out = sys.argv[1]
    stamps = "stamps" in sys.argv[2:]
    rot = "norot" not in sys.argv[2:]
    open(out, "w").write(gen(stamps=stamps, rot=rot))
```

```python
import sys
from common import *

XREG = 0
RING = 39168
SLOT = 27648
WO_LDS = RING + 3 * SLOT
LDS_TOTAL = WO_LDS + 41472

def gen(stamps=False, rot=True, xpol="nt", wpol="", opol="", ldsout=True, dbg=False):
    a = Asm()
    ACC = 0
    AF = 144
    BF = 180
    XA = 188
    WA0, WA1 = 193, 194
    WOA = 195
    OA = 196
    OW = 197
    T = 198
    STV = 224
    TID = 226
    OR_ = 228
    stamp_n = [0]
    def stamp():
        if not stamps: return
        i = stamp_n[0]; stamp_n[0] += 1
        a(f"s_memtime s[60:61]")
        a(f"s_memrealtime s[62:63]")
        a("s_waitcnt lgkmcnt(0)")
        a(f"v_writelane_b32 v{STV}, s60, {i}")
        a(f"v_writelane_b32 v{STV+1}, s62, {i}")
    def stamp_store():
        if not stamps: return
        a("s_lshl_b32 s60, s2, 3")
        a("s_add_u32 s60, s60, s36")
        a("s_lshl_b32 s60, s60, 9")
        a(f"v_and_b32 v{T}, 63, v{TID}")
        a(f"v_lshlrev_b32 v{T}, 2, v{T}")
        a(f"v_add_u32 v{T}, s60, v{T}")
        a(f"buffer_store_dword v{STV}, v{T}, s[32:35], 0 offen")
        a(f"buffer_store_dword v{STV+1}, v{T}, s[32:35], 0 offen offset:256")

    a("s_cmp_ge_u32 s2, 250")
    a("s_cbranch_scc1 L_end")
    a("s_load_dwordx8 s[4:11], s[0:1], 0")
    if stamps:
        a("s_load_dwordx2 s[14:15], s[0:1], 40")
        a(f"s_memtime s[60:61]")
        a(f"s_memrealtime s[62:63]")
    a(f"v_mov_b32 v{TID}, v0")
    if stamps:
        a(f"v_mov_b32 v{STV}, 0\nv_mov_b32 v{STV+1}, 0")
    LANE = T + 1
    a(f"v_lshrrev_b32 v{T}, 6, v0")
    a(f"v_and_b32 v{LANE}, 63, v0")
    a(f"v_readfirstlane_b32 s36, v{T}")
    XV = T + 4
    a("s_lshl_b32 s41, s2, 7")
    a("s_sub_u32 s41, s41, 8")
    a("s_mul_i32 s41, s41, 288")
    a("s_cmp_eq_u32 s2, 0")
    a("s_cselect_b32 s42, 144, 0")
    a("s_cmp_eq_u32 s2, 125")
    a("s_cselect_b32 s42, 144, s42")
    a(f"v_mov_b32 v{T+10}, 0x7fff0000")
    for i in range(5):
        u, q = T+2, T+3
        if i == 0:
            a(f"v_mul_u32_u24 v{q}, 58255, v0")
            a(f"v_bfe_u32 v{q}, v{q}, 23, 1")
            a(f"v_xor_b32 v{q}, v{q}, v0")
            a(f"v_cmp_gt_u32 vcc, s42, v0")
            a(f"v_lshl_add_u32 v{XV}, v{q}, 4, s41")
            a("s_nop 0")
            a(f"v_cndmask_b32 v{XV}, v{XV}, v{T+10}, vcc")
        else:
            a(f"v_add_u32 v{u}, {512*i}, v0")
            a(f"v_mul_u32_u24 v{q}, 58255, v{u}")
            a(f"v_bfe_u32 v{q}, v{q}, 23, 1")
            a(f"v_xor_b32 v{q}, v{q}, v{u}")
            a(f"v_lshl_add_u32 v{XV+i}, v{q}, 4, s41")
    a(f"v_cmp_gt_u32 vcc, 400, v0")
    a("s_lshl_b32 s43, s36, 10")
    if rot:
        a("s_lshr_b32 s39, s2, 3")
        a("s_mul_i32 s40, s39, 4370")
        a("s_lshr_b32 s40, s40, 16")
        a("s_mul_i32 s40, s40, 15")
        a("s_sub_u32 s39, s39, s40")
        a("s_mul_i32 s37, s39, 13108")
        a("s_lshr_b32 s37, s37, 16")
        a("s_mul_i32 s40, s37, 5")
        a("s_sub_u32 s38, s39, s40")
    else:
        a("s_mov_b32 s37, 0\ns_mov_b32 s38, 0")
    a("s_mov_b64 s[56:57], vcc")
    a("s_mov_b32 s18, 9216000\ns_mov_b32 s19, 0x20000")
    a("s_mov_b32 m0, s43")
    a("s_waitcnt lgkmcnt(0)")
    a("s_mov_b32 s16, s4\ns_mov_b32 s17, s5")
    for i in range(5):
        if i > 0:
            a(f"s_add_u32 m0, s43, {XREG + i*8192}")
        if i == 4:
            a("s_mov_b64 exec, s[56:57]")
            a("s_cbranch_execz L_skipx")
        else:
            a("s_nop 0")
        a(f"buffer_load_dwordx4 v{XV+i}, s[16:19], 0 offen {xpol} lds")
    a("L_skipx:")
    a("s_mov_b64 exec, -1")
    if stamps:
        a(f"v_writelane_b32 v{STV}, s60, 0")
        a(f"v_writelane_b32 v{STV+1}, s62, 0")
        stamp_n[0] = 1
    a("s_mov_b32 s20, s6\ns_mov_b32 s21, s7\ns_mov_b32 s22, 414720\ns_mov_b32 s23, 0x20000")
    a("s_mov_b32 s24, s8\ns_mov_b32 s25, s9\ns_mov_b32 s26, 41472\ns_mov_b32 s27, 0x20000")
    a("s_mov_b32 s28, s10\ns_mov_b32 s29, s11\ns_mov_b32 s30, 9216000\ns_mov_b32 s31, 0x20000")
    if stamps:
        a("s_mov_b32 s32, s14\ns_mov_b32 s33, s15\ns_mov_b32 s34, 0x1000000\ns_mov_b32 s35, 0x20000")
    a("s_cmp_ge_u32 s36, 4")
    a("s_cbranch_scc1 L_loader")

    stamp()
    H, TT = T+2, T+3
    a(f"v_lshrrev_b32 v{H}, 5, v{LANE}")
    a(f"v_and_b32 v{TT}, 31, v{LANE}")
    a("s_lshl_b32 s40, s36, 5")
    a("s_add_u32 s40, s40, 8")
    a("s_movk_i32 s44, 288")
    a("s_mul_i32 s45, s37, 96")
    for i in range(5):
        a(f"s_add_u32 s41, s38, {i}")
        a("s_cmp_ge_u32 s41, 5")
        a("s_cselect_b32 s42, 5, 0")
        a("s_sub_u32 s41, s41, s42")
        a("s_lshl_b32 s41, s41, 1")
        a("s_sub_u32 s41, s40, s41")
        a(f"v_add_u32 v{T+8}, s41, v{TT}")
        a(f"v_bfe_u32 v{T+9}, v{T+8}, 3, 1")
        a(f"v_xor_b32 v{T+9}, v{T+9}, v{H}")
        a(f"v_lshl_add_u32 v{T+9}, v{T+9}, 4, s45")
        a(f"v_mad_u32_u24 v{XA+i}, v{T+8}, s44, v{T+9}")
    a("s_cmp_eq_u32 s37, 2")
    a("s_cselect_b32 s46, -2, 1")
    a("s_mul_i32 s46, s46, 96")
    a("s_cmp_eq_u32 s37, 1")
    a("s_cselect_b32 s47, -2, 1")
    a("s_mul_i32 s47, s47, 96")
    a(f"v_bfe_u32 v{T+8}, v{LANE}, 2, 2")
    a(f"v_lshl_add_u32 v{T+8}, v{H}, 3, v{T+8}")
    a("s_movk_i32 s44, 576")
    a(f"v_mul_u32_u24 v{T+8}, s44, v{T+8}")
    a(f"v_bfe_u32 v{T+9}, v{LANE}, 4, 1")
    a("s_movk_i32 s44, 288")
    a(f"v_mad_u32_u24 v{T+8}, v{T+9}, s44, v{T+8}")
    a(f"v_and_b32 v{T+10}, 3, v{LANE}")
    a(f"v_lshl_add_u32 v{T+8}, v{T+10}, 3, v{T+8}")
    a(f"v_add_u32 v{WA0}, {RING}, v{T+8}")
    a(f"v_add_u32 v{WA1}, {RING + 2*SLOT}, v{T+8}")
    a(f"v_bfe_u32 v{T+8}, v{LANE}, 2, 2")
    a(f"v_lshl_add_u32 v{T+8}, v{H}, 2, v{T+8}")
    a(f"v_mul_u32_u24 v{T+8}, s44, v{T+8}")
    a(f"v_lshl_add_u32 v{T+8}, v{T+9}, 7, v{T+8}")
    a(f"v_and_b32 v{T+10}, 1, v{LANE}")
    a(f"v_lshl_add_u32 v{T+8}, v{T+10}, 4, v{T+8}")
    a(f"v_bfe_u32 v{T+10}, v{LANE}, 1, 1")
    a(f"v_lshl_add_u32 v{T+8}, v{T+10}, 3, v{T+8}")
    a(f"v_add_u32 v{WOA}, {WO_LDS}, v{T+8}")
    a("s_lshl_b32 s40, s2, 7")
    a("s_lshl_b32 s41, s36, 5")
    a("s_add_u32 s40, s40, s41")
    if not ldsout:
        a(f"v_add_u32 v{T+8}, s40, v{TT}")
        a(f"v_lshlrev_b32 v{T+9}, 4, v{H}")
        a(f"v_mad_u32_u24 v{OA}, v{T+8}, s44, v{T+9}")
    else:
        a("s_mul_i32 s41, s36, 9216")
        a(f"s_add_u32 s41, s41, {RING}")
        a(f"v_bfe_u32 v{T+9}, v{TT}, 2, 1")
        a(f"v_xor_b32 v{T+9}, v{T+9}, v{H}")
        a(f"v_lshl_add_u32 v{T+9}, v{T+9}, 4, s41")
        a(f"v_mad_u32_u24 v{OW}, v{TT}, s44, v{T+9}")
        a(f"v_lshl_add_u32 v{OR_}, v{LANE}, 4, s41")
        a("s_mul_i32 s48, s40, 288")

    q = []
    def rd(instr, tag):
        a(instr); q.append(tag)
    def need(tags):
        idx = -1
        for i, t in enumerate(q):
            if t in tags: idx = i
        if idx < 0: return
        n = len(q) - 1 - idx
        a(f"s_waitcnt lgkmcnt({min(n,15)})")
        keep = min(n, 15)
        del q[:len(q)-keep]
    def readA(k, j):
        s, ks = divmod(k, 3)
        slot = s % 4
        base = WA0 if slot < 2 else WA1
        off = (slot % 2) * SLOT + ks * 9216 + j * 32
        r = AF + 4*j
        rd(f"ds_read_b64_tr_b16 v[{r}:{r+1}], v{base} offset:{off}", ("A", k, j))
        rd(f"ds_read_b64_tr_b16 v[{r+2}:{r+3}], v{base} offset:{off+2304}", ("A", k, j))
    def readB(k):
        s, ks = divmod(k, 3)
        cgj, ti = divmod(s, 5)
        r = BF + 4*(k % 2)
        rd(f"ds_read_b128 v[{r}:{r+3}], v{XA+ti} offset:{XREG + ks*32}", ("B", k))
        if ks == 2 and cgj < 2:
            a(f"v_add_u32 v{XA+ti}, s{46+cgj}, v{XA+ti}")

    a("s_waitcnt vmcnt(0)")
    a("s_barrier")
    stamp()
    readB(0)
    for j in range(9): readA(0, j)
    for k in range(45):
        nxt = k + 1
        newstage = (nxt % 3 == 0) and nxt < 45
        pending = []
        for j in range(9):
            need({("A", k, j), ("B", k)})
            acc = ACC + 16*j
            cop = "0" if k == 0 else f"v[{acc}:{acc+15}]"
            br = BF + 4*(k % 2)
            a(f"v_mfma_f32_32x32x16_bf16 v[{acc}:{acc+15}], v[{AF+4*j}:{AF+4*j+3}], v[{br}:{br+3}], {cop}")
            if nxt < 45:
                pending.append(j)
                if newstage and j < 2:
                    continue
                if newstage and j == 2:
                    a("s_waitcnt lgkmcnt(0)"); q.clear()
                    a("s_barrier")
                if (j == 0 and not newstage) or (newstage and j == 2):
                    readB(nxt)
                for _ in range(2):
                    if pending:
                        readA(nxt, pending.pop(0))
        assert not pending
    stamp()
    a("s_nop 7")
    a("s_mov_b32 s40, 0x4038aa3b")
    a("s_mov_b32 s41, 0x4038aa3b")
    a("s_mov_b32 s42, 0xbfb8aa3b")
    a("s_mov_b32 s43, 0xbfb8aa3b")
    a("s_mov_b32 s44, 0x42800000")
    Z = AF
    for j in range(9):
        f = ACC + 16*j; g = f + 8
        for r in range(0, 8, 2):
            a(f"v_pk_mul_f32 v[{f+r}:{f+r+1}], v[{f+r}:{f+r+1}], s[40:41]")
            a(f"v_pk_mul_f32 v[{g+r}:{g+r+1}], v[{g+r}:{g+r+1}], s[42:43]")
        for r in range(8):
            a(f"v_min_f32 v{f+r}, s44, v{f+r}")
        for r in range(8):
            a(f"v_exp_f32 v{g+r}, v{g+r}")
        for r in range(8):
            a(f"v_exp_f32 v{f+r}, v{f+r}")
        for r in range(0, 8, 2):
            a(f"v_pk_add_f32 v[{g+r}:{g+r+1}], v[{g+r}:{g+r+1}], 1.0 op_sel_hi:[1,0]")
        for r in range(0, 8, 2):
            a(f"v_pk_fma_f32 v[{g+r}:{g+r+1}], v[{f+r}:{f+r+1}], v[{g+r}:{g+r+1}], v[{g+r}:{g+r+1}]")
        for r in range(8):
            a(f"v_rcp_f32 v{g+r}, v{g+r}")
        a("s_nop 0")
        for r in range(0, 8, 2):
            a(f"v_pk_fma_f32 v[{f+r}:{f+r+1}], v[{f+r}:{f+r+1}], v[{g+r}:{g+r+1}], v[{g+r}:{g+r+1}] neg_lo:[0,0,1] neg_hi:[0,0,1]")
        for r in range(0, 8, 2):
            a(f"v_cvt_pk_bf16_f32 v{Z+4*j+r//2}, v{f+r}, v{f+r+1}")
    stamp()
    a("s_barrier")
    OACC = 0
    OF = 80
    def readO(j, qq):
        r = OF + 4*((j*5+qq) % 10)
        off = j*4608 + (qq*32 if qq < 4 else 256)
        rd(f"ds_read_b64_tr_b16 v[{r}:{r+1}], v{WOA} offset:{off}", ("O", j, qq))
        rd(f"ds_read_b64_tr_b16 v[{r+2}:{r+3}], v{WOA} offset:{off+2304}", ("O", j, qq))
    order = [(j, qq) for j in range(9) for qq in range(5)]
    for i in range(7): readO(*order[i])
    for i, (j, qq) in enumerate(order):
        need({("O", j, qq)})
        acc = OACC + 16*qq
        cop = "0" if j == 0 else f"v[{acc}:{acc+15}]"
        r = OF + 4*((j*5+qq) % 10)
        a(f"v_mfma_f32_32x32x16_bf16 v[{acc}:{acc+15}], v[{r}:{r+3}], v[{Z+4*j}:{Z+4*j+3}], {cop}")
        if i + 7 < len(order): readO(*order[i+7])
    stamp()
    P = 120
    if ldsout:
        GA = 160
        GA = T+4
        for n in range(9):
            a(f"v_add_u32 v{T+2}, {64*n}, v{LANE}")
            a(f"v_mul_u32_u24 v{T+3}, 58255, v{T+2}")
            a(f"v_bfe_u32 v{T+3}, v{T+3}, 22, 1")
            a(f"v_xor_b32 v{T+3}, v{T+3}, v{T+2}")
            a(f"v_lshl_add_u32 v{GA+n}, v{T+3}, 4, s48")
    else:
        a("s_nop 7")
        a("s_nop 7")
    n = 0
    for qq in range(5):
        for half in range(2 if qq < 4 else 1):
            src = OACC + 16*qq + 8*half
            p = P + 4*n
            for r in range(4):
                a(f"v_cvt_pk_bf16_f32 v{p+r}, v{src+2*r}, v{src+2*r+1}")
            off = (qq*32 + half*128) if qq < 4 else 256
            if ldsout:
                a(f"ds_write_b128 v{OW}, v[{p}:{p+3}] offset:{off}")
            else:
                a(f"buffer_store_dwordx4 v[{p}:{p+3}], v{OA}, s[28:31], 0 offen offset:{off} {opol}")
            n += 1
    if ldsout:
        a("s_waitcnt lgkmcnt(0)")
        for n in range(9):
            a(f"ds_read_b128 v[{4*n}:{4*n+3}], v{OR_} offset:{n*1024}")
        for n in range(9):
            a(f"s_waitcnt lgkmcnt({8-n})")
            a(f"buffer_store_dwordx4 v[{4*n}:{4*n+3}], v{GA+n}, s[28:31], 0 offen {opol}")
    stamp()
    if stamps:
        a("s_waitcnt vmcnt(0)")
        stamp()
    stamp_store()
    a("s_endpgm")

    a("L_loader:")
    stamp_n[0] = 1
    VD = T + 10
    a(f"v_lshlrev_b32 v{VD}, 4, v{LANE}")
    a("s_sub_u32 s40, s36, 4")
    a("s_mul_i32 s41, s40, 6912")
    for i in range(5):
        a(f"s_add_u32 s{45+i}, s38, {i}")
        a(f"s_cmp_ge_u32 s{45+i}, 5")
        a("s_cselect_b32 s42, 5, 0")
        a(f"s_sub_u32 s{45+i}, s{45+i}, s42")
        a(f"s_mul_i32 s{45+i}, s{45+i}, 82944")
    for j in range(3):
        a(f"s_add_u32 s{50+j}, s37, {j}")
        a(f"s_cmp_ge_u32 s{50+j}, 3")
        a("s_cselect_b32 s42, 3, 0")
        a(f"s_sub_u32 s{50+j}, s{50+j}, s42")
        a(f"s_mul_i32 s{50+j}, s{50+j}, 27648")
        a(f"s_add_u32 s{50+j}, s{50+j}, s41")
    def issue_stage(s):
        cgj, ti = divmod(s, 5)
        a(f"s_add_u32 s43, s{45+ti}, s{50+cgj}")
        a(f"s_add_u32 m0, s41, {RING + (s%4)*SLOT}")
        a("s_add_u32 s44, s43, 4096")
        for n in range(4):
            a(f"buffer_load_dwordx4 v{VD}, s[20:23], s43 offen offset:{n*1024} {wpol} lds")
        a(f"s_add_u32 m0, s41, {RING + (s%4)*SLOT + 4096}")
        a("s_nop 0")
        for n in range(2):
            a(f"buffer_load_dwordx4 v{VD}, s[20:23], s44 offen offset:{n*1024} {wpol} lds")
        a("s_mov_b32 exec_hi, 0xffff")
        a(f"buffer_load_dwordx4 v{VD}, s[20:23], s44 offen offset:2048 {wpol} lds")
        a("s_mov_b32 exec_hi, -1")
    def issue_wo():
        a("s_mul_i32 s43, s40, 10368")
        for b in range(3):
            a(f"s_add_u32 m0, s43, {WO_LDS}")
            a("s_nop 0")
            for n in range(4):
                p = b*4 + n
                if p < 10:
                    a(f"buffer_load_dwordx4 v{VD}, s[24:27], s43 offen offset:{n*1024} lds")
                elif p == 10:
                    a("s_mov_b64 exec, 0xff")
                    a(f"buffer_load_dwordx4 v{VD}, s[24:27], s43 offen offset:{n*1024} lds")
                    a("s_mov_b64 exec, -1")
            a("s_add_u32 s43, s43, 4096")
    issue_stage(0)
    issue_stage(1)
    stamp()
    a("s_waitcnt vmcnt(7)")
    stamp()
    a("s_barrier")
    issue_stage(2)
    issue_stage(3)
    for s in range(1, 15):
        if s <= 12: a("s_waitcnt vmcnt(14)")
        elif s == 13: a("s_waitcnt vmcnt(18)")
        else: a("s_waitcnt vmcnt(11)")
        stamp()
        a("s_barrier")
        stamp()
        if s + 3 <= 14: issue_stage(s+3)
        elif s == 12: issue_wo()
    a("s_waitcnt vmcnt(0)")
    a("s_barrier")
    stamp_store()
    a("L_end:")
    a("s_endpgm")
    return wrap(a.text(), 250, 512, LDS_TOTAL, 232)

if __name__ == "__main__":
    out = sys.argv[1]
    kw = {}
    for arg in sys.argv[2:]:
        k, _, v = arg.partition("=")
        if v == "": kw[k] = True
        elif v in ("0", "1"): kw[k] = bool(int(v))
        else: kw[k] = v.replace("+", " ") if v != "none" else ""
    open(out, "w").write(gen(**kw))
```

```python
import sys
from common import *

XREG = 0
RING = 39168
SLOT = 27648
WO_LDS = RING + 3 * SLOT
LDS_TOTAL = WO_LDS + 41472

def gen(stamps=False, rot=True, xpol="nt", wpol="", opol="", ldsout=True, dbg=False):
    a = Asm()
    ACC = 0
    AF = 144
    BF = 180
    XA = 188
    WA0, WA1 = 193, 194
    WOA = 195
    OA = 196
    OW = 197
    T = 198
    STV = 224
    TID = 226
    OR_ = 228
    stamp_n = [0]
    def stamp():
        if not stamps: return
        i = stamp_n[0]; stamp_n[0] += 1
        a(f"s_memtime s[60:61]")
        a(f"s_memrealtime s[62:63]")
        a("s_waitcnt lgkmcnt(0)")
        a(f"v_writelane_b32 v{STV}, s60, {i}")
        a(f"v_writelane_b32 v{STV+1}, s62, {i}")
    def stamp_store(dbase=0):
        if not stamps: return
        if dbg:
            a("s_and_b32 s60, s36, 3")
            a("s_cmp_lg_u32 s60, 0")
            a(f"s_cbranch_scc1 L_nodbg{dbase}")
            a(f"v_readlane_b32 s60, v{STV+1}, 0")
            a(f"v_and_b32 v{T}, 63, v{TID}")
            a("s_nop 1")
            a(f"v_subrev_u32 v{T+2}, s60, v{STV+1}")
            a(f"v_lshlrev_b32 v{T}, 2, v{T}")
            a("s_mov_b64 exec, 0xff")
            a(f"buffer_atomic_umax v{T+2}, v{T}, s[32:35], 0 offen offset:{dbase*4}")
            a("s_waitcnt vmcnt(0)")
            a(f"L_nodbg{dbase}:")
            return
        a("s_lshl_b32 s60, s2, 3")
        a("s_add_u32 s60, s60, s36")
        a("s_lshl_b32 s60, s60, 9")
        a(f"v_and_b32 v{T}, 63, v{TID}")
        a(f"v_lshlrev_b32 v{T}, 2, v{T}")
        a(f"v_add_u32 v{T}, s60, v{T}")
        a(f"buffer_store_dword v{STV}, v{T}, s[32:35], 0 offen")
        a(f"buffer_store_dword v{STV+1}, v{T}, s[32:35], 0 offen offset:256")

    a("s_cmp_ge_u32 s2, 250")
    a("s_cbranch_scc1 L_end")
    a("s_load_dwordx8 s[4:11], s[0:1], 0")
    if stamps:
        a(f"s_load_dwordx2 s[14:15], s[0:1], {32 if dbg else 40}")
        a(f"s_memtime s[60:61]")
        a(f"s_memrealtime s[62:63]")
    a(f"v_mov_b32 v{TID}, v0")
    if stamps:
        a(f"v_mov_b32 v{STV}, 0\nv_mov_b32 v{STV+1}, 0")
    LANE = T + 1
    a(f"v_lshrrev_b32 v{T}, 6, v0")
    a(f"v_and_b32 v{LANE}, 63, v0")
    a(f"v_readfirstlane_b32 s36, v{T}")
    XV = T + 4
    a("s_lshl_b32 s41, s2, 7")
    a("s_sub_u32 s41, s41, 8")
    a("s_mul_i32 s41, s41, 288")
    a("s_cmp_eq_u32 s2, 0")
    a("s_cselect_b32 s42, 144, 0")
    a("s_cmp_eq_u32 s2, 125")
    a("s_cselect_b32 s42, 144, s42")
    a(f"v_mov_b32 v{T+10}, 0x7fff0000")
    for i in range(5):
        u, q = T+2, T+3
        if i == 0:
            a(f"v_mul_u32_u24 v{q}, 58255, v0")
            a(f"v_bfe_u32 v{q}, v{q}, 23, 1")
            a(f"v_xor_b32 v{q}, v{q}, v0")
            a(f"v_cmp_gt_u32 vcc, s42, v0")
            a(f"v_lshl_add_u32 v{XV}, v{q}, 4, s41")
            a("s_nop 0")
            a(f"v_cndmask_b32 v{XV}, v{XV}, v{T+10}, vcc")
        else:
            a(f"v_add_u32 v{u}, {512*i}, v0")
            a(f"v_mul_u32_u24 v{q}, 58255, v{u}")
            a(f"v_bfe_u32 v{q}, v{q}, 23, 1")
            a(f"v_xor_b32 v{q}, v{q}, v{u}")
            a(f"v_lshl_add_u32 v{XV+i}, v{q}, 4, s41")
    a(f"v_cmp_gt_u32 vcc, 400, v0")
    a("s_lshl_b32 s43, s36, 10")
    if rot:
        a("s_lshr_b32 s39, s2, 3")
        a("s_mul_i32 s40, s39, 4370")
        a("s_lshr_b32 s40, s40, 16")
        a("s_mul_i32 s40, s40, 15")
        a("s_sub_u32 s39, s39, s40")
        a("s_mul_i32 s37, s39, 13108")
        a("s_lshr_b32 s37, s37, 16")
        a("s_mul_i32 s40, s37, 5")
        a("s_sub_u32 s38, s39, s40")
    else:
        a("s_mov_b32 s37, 0\ns_mov_b32 s38, 0")
    a("s_mov_b64 s[56:57], vcc")
    a("s_mov_b32 s18, 9216000\ns_mov_b32 s19, 0x20000")
    a("s_mov_b32 m0, s43")
    a("s_waitcnt lgkmcnt(0)")
    a("s_mov_b32 s16, s4\ns_mov_b32 s17, s5")
    for i in range(5):
        if i > 0:
            a(f"s_add_u32 m0, s43, {XREG + i*8192}")
        if i == 4:
            a("s_mov_b64 exec, s[56:57]")
            a("s_cbranch_execz L_skipx")
        else:
            a("s_nop 0")
        a(f"buffer_load_dwordx4 v{XV+i}, s[16:19], 0 offen {xpol} lds")
    a("L_skipx:")
    a("s_mov_b64 exec, -1")
    if stamps:
        a(f"v_writelane_b32 v{STV}, s60, 0")
        a(f"v_writelane_b32 v{STV+1}, s62, 0")
        stamp_n[0] = 1
    a("s_mov_b32 s20, s6\ns_mov_b32 s21, s7\ns_mov_b32 s22, 414720\ns_mov_b32 s23, 0x20000")
    a("s_mov_b32 s24, s8\ns_mov_b32 s25, s9\ns_mov_b32 s26, 41472\ns_mov_b32 s27, 0x20000")
    a("s_mov_b32 s28, s10\ns_mov_b32 s29, s11\ns_mov_b32 s30, 9216000\ns_mov_b32 s31, 0x20000")
    if stamps:
        a(f"s_mov_b32 s32, s14\ns_mov_b32 s33, s15\ns_mov_b32 s34, {256 if dbg else 0x1000000}\ns_mov_b32 s35, 0x20000")
    a("s_cmp_ge_u32 s36, 4")
    a("s_cbranch_scc1 L_loader")

    stamp()
    H, TT = T+2, T+3
    a(f"v_lshrrev_b32 v{H}, 5, v{LANE}")
    a(f"v_and_b32 v{TT}, 31, v{LANE}")
    a("s_lshl_b32 s40, s36, 5")
    a("s_add_u32 s40, s40, 8")
    a("s_movk_i32 s44, 288")
    a("s_mul_i32 s45, s37, 96")
    for i in range(5):
        a(f"s_add_u32 s41, s38, {i}")
        a("s_cmp_ge_u32 s41, 5")
        a("s_cselect_b32 s42, 5, 0")
        a("s_sub_u32 s41, s41, s42")
        a("s_lshl_b32 s41, s41, 1")
        a("s_sub_u32 s41, s40, s41")
        a(f"v_add_u32 v{T+8}, s41, v{TT}")
        a(f"v_bfe_u32 v{T+9}, v{T+8}, 3, 1")
        a(f"v_xor_b32 v{T+9}, v{T+9}, v{H}")
        a(f"v_lshl_add_u32 v{T+9}, v{T+9}, 4, s45")
        a(f"v_mad_u32_u24 v{XA+i}, v{T+8}, s44, v{T+9}")
    a("s_cmp_eq_u32 s37, 2")
    a("s_cselect_b32 s46, -2, 1")
    a("s_mul_i32 s46, s46, 96")
    a("s_cmp_eq_u32 s37, 1")
    a("s_cselect_b32 s47, -2, 1")
    a("s_mul_i32 s47, s47, 96")
    a(f"v_bfe_u32 v{T+8}, v{LANE}, 2, 2")
    a(f"v_lshl_add_u32 v{T+8}, v{H}, 3, v{T+8}")
    a("s_movk_i32 s44, 576")
    a(f"v_mul_u32_u24 v{T+8}, s44, v{T+8}")
    a(f"v_bfe_u32 v{T+9}, v{LANE}, 4, 1")
    a("s_movk_i32 s44, 288")
    a(f"v_mad_u32_u24 v{T+8}, v{T+9}, s44, v{T+8}")
    a(f"v_and_b32 v{T+10}, 3, v{LANE}")
    a(f"v_lshl_add_u32 v{T+8}, v{T+10}, 3, v{T+8}")
    a(f"v_add_u32 v{WA0}, {RING}, v{T+8}")
    a(f"v_add_u32 v{WA1}, {RING + 2*SLOT}, v{T+8}")
    a(f"v_bfe_u32 v{T+8}, v{LANE}, 2, 2")
    a(f"v_lshl_add_u32 v{T+8}, v{H}, 2, v{T+8}")
    a(f"v_mul_u32_u24 v{T+8}, s44, v{T+8}")
    a(f"v_lshl_add_u32 v{T+8}, v{T+9}, 7, v{T+8}")
    a(f"v_and_b32 v{T+10}, 1, v{LANE}")
    a(f"v_lshl_add_u32 v{T+8}, v{T+10}, 4, v{T+8}")
    a(f"v_bfe_u32 v{T+10}, v{LANE}, 1, 1")
    a(f"v_lshl_add_u32 v{T+8}, v{T+10}, 3, v{T+8}")
    a(f"v_add_u32 v{WOA}, {WO_LDS}, v{T+8}")
    a("s_lshl_b32 s40, s2, 7")
    a("s_lshl_b32 s41, s36, 5")
    a("s_add_u32 s40, s40, s41")
    if not ldsout:
        a(f"v_add_u32 v{T+8}, s40, v{TT}")
        a(f"v_lshlrev_b32 v{T+9}, 4, v{H}")
        a(f"v_mad_u32_u24 v{OA}, v{T+8}, s44, v{T+9}")
    else:
        a("s_mul_i32 s41, s36, 9216")
        a(f"s_add_u32 s41, s41, {RING}")
        a(f"v_bfe_u32 v{T+9}, v{TT}, 2, 1")
        a(f"v_xor_b32 v{T+9}, v{T+9}, v{H}")
        a(f"v_lshl_add_u32 v{T+9}, v{T+9}, 4, s41")
        a(f"v_mad_u32_u24 v{OW}, v{TT}, s44, v{T+9}")
        a(f"v_lshl_add_u32 v{OR_}, v{LANE}, 4, s41")
        a("s_mul_i32 s48, s40, 288")

    q = []
    def rd(instr, tag):
        a(instr); q.append(tag)
    def need(tags):
        idx = -1
        for i, t in enumerate(q):
            if t in tags: idx = i
        if idx < 0: return
        n = len(q) - 1 - idx
        a(f"s_waitcnt lgkmcnt({min(n,15)})")
        keep = min(n, 15)
        del q[:len(q)-keep]
    def readA(k, j):
        s, ks = divmod(k, 3)
        slot = s % 4
        base = WA0 if slot < 2 else WA1
        off = (slot % 2) * SLOT + ks * 9216 + j * 32
        r = AF + 4*j
        rd(f"ds_read_b64_tr_b16 v[{r}:{r+1}], v{base} offset:{off}", ("A", k, j))
        rd(f"ds_read_b64_tr_b16 v[{r+2}:{r+3}], v{base} offset:{off+2304}", ("A", k, j))
    def readB(k):
        s, ks = divmod(k, 3)
        cgj, ti = divmod(s, 5)
        r = BF + 4*(k % 2)
        rd(f"ds_read_b128 v[{r}:{r+3}], v{XA+ti} offset:{XREG + ks*32}", ("B", k))
        if ks == 2 and cgj < 2:
            a(f"v_add_u32 v{XA+ti}, s{46+cgj}, v{XA+ti}")

    a("s_waitcnt vmcnt(0)")
    a("s_barrier")
    stamp()
    readB(0)
    for j in range(9): readA(0, j)
    for k in range(45):
        nxt = k + 1
        newstage = (nxt % 3 == 0) and nxt < 45
        pending = []
        for j in range(9):
            need({("A", k, j), ("B", k)})
            acc = ACC + 16*j
            cop = "0" if k == 0 else f"v[{acc}:{acc+15}]"
            br = BF + 4*(k % 2)
            a(f"v_mfma_f32_32x32x16_bf16 v[{acc}:{acc+15}], v[{AF+4*j}:{AF+4*j+3}], v[{br}:{br+3}], {cop}")
            if nxt < 45:
                pending.append(j)
                if newstage and j < 2:
                    continue
                if newstage and j == 2:
                    a("s_waitcnt lgkmcnt(0)"); q.clear()
                    a("s_barrier")
                if (j == 0 and not newstage) or (newstage and j == 2):
                    readB(nxt)
                for _ in range(2):
                    if pending:
                        readA(nxt, pending.pop(0))
        assert not pending
    stamp()
    a("s_nop 7")
    a("s_mov_b32 s40, 0x4038aa3b")
    a("s_mov_b32 s41, 0x4038aa3b")
    a("s_mov_b32 s42, 0xbfb8aa3b")
    a("s_mov_b32 s43, 0xbfb8aa3b")
    a("s_mov_b32 s44, 0x42800000")
    Z = AF
    for j in range(9):
        f = ACC + 16*j; g = f + 8
        for r in range(0, 8, 2):
            a(f"v_pk_mul_f32 v[{f+r}:{f+r+1}], v[{f+r}:{f+r+1}], s[40:41]")
            a(f"v_pk_mul_f32 v[{g+r}:{g+r+1}], v[{g+r}:{g+r+1}], s[42:43]")
        for r in range(8):
            a(f"v_min_f32 v{f+r}, s44, v{f+r}")
        for r in range(8):
            a(f"v_exp_f32 v{g+r}, v{g+r}")
        for r in range(8):
            a(f"v_exp_f32 v{f+r}, v{f+r}")
        for r in range(0, 8, 2):
            a(f"v_pk_add_f32 v[{g+r}:{g+r+1}], v[{g+r}:{g+r+1}], 1.0 op_sel_hi:[1,0]")
        for r in range(0, 8, 2):
            a(f"v_pk_fma_f32 v[{g+r}:{g+r+1}], v[{f+r}:{f+r+1}], v[{g+r}:{g+r+1}], v[{g+r}:{g+r+1}]")
        for r in range(8):
            a(f"v_rcp_f32 v{g+r}, v{g+r}")
        a("s_nop 0")
        for r in range(0, 8, 2):
            a(f"v_pk_fma_f32 v[{f+r}:{f+r+1}], v[{f+r}:{f+r+1}], v[{g+r}:{g+r+1}], v[{g+r}:{g+r+1}] neg_lo:[0,0,1] neg_hi:[0,0,1]")
        for r in range(0, 8, 2):
            a(f"v_cvt_pk_bf16_f32 v{Z+4*j+r//2}, v{f+r}, v{f+r+1}")
    stamp()
    a("s_barrier")
    OACC = 0
    OF = 80
    def readO(j, qq):
        r = OF + 4*((j*5+qq) % 10)
        off = j*4608 + (qq*32 if qq < 4 else 256)
        rd(f"ds_read_b64_tr_b16 v[{r}:{r+1}], v{WOA} offset:{off}", ("O", j, qq))
        rd(f"ds_read_b64_tr_b16 v[{r+2}:{r+3}], v{WOA} offset:{off+2304}", ("O", j, qq))
    order = [(j, qq) for j in range(9) for qq in range(5)]
    for i in range(7): readO(*order[i])
    for i, (j, qq) in enumerate(order):
        need({("O", j, qq)})
        acc = OACC + 16*qq
        cop = "0" if j == 0 else f"v[{acc}:{acc+15}]"
        r = OF + 4*((j*5+qq) % 10)
        a(f"v_mfma_f32_32x32x16_bf16 v[{acc}:{acc+15}], v[{r}:{r+3}], v[{Z+4*j}:{Z+4*j+3}], {cop}")
        if i + 7 < len(order): readO(*order[i+7])
    stamp()
    P = 120
    if ldsout:
        GA = 160
        GA = T+4
        for n in range(9):
            a(f"v_add_u32 v{T+2}, {64*n}, v{LANE}")
            a(f"v_mul_u32_u24 v{T+3}, 58255, v{T+2}")
            a(f"v_bfe_u32 v{T+3}, v{T+3}, 22, 1")
            a(f"v_xor_b32 v{T+3}, v{T+3}, v{T+2}")
            a(f"v_lshl_add_u32 v{GA+n}, v{T+3}, 4, s48")
    else:
        a("s_nop 7")
        a("s_nop 7")
    n = 0
    for qq in range(5):
        for half in range(2 if qq < 4 else 1):
            src = OACC + 16*qq + 8*half
            p = P + 4*n
            for r in range(4):
                a(f"v_cvt_pk_bf16_f32 v{p+r}, v{src+2*r}, v{src+2*r+1}")
            off = (qq*32 + half*128) if qq < 4 else 256
            if ldsout:
                a(f"ds_write_b128 v{OW}, v[{p}:{p+3}] offset:{off}")
            else:
                a(f"buffer_store_dwordx4 v[{p}:{p+3}], v{OA}, s[28:31], 0 offen offset:{off} {opol}")
            n += 1
    if ldsout:
        a("s_waitcnt lgkmcnt(0)")
        for n in range(9):
            a(f"ds_read_b128 v[{4*n}:{4*n+3}], v{OR_} offset:{n*1024}")
        for n in range(9):
            a(f"s_waitcnt lgkmcnt({8-n})")
            a(f"buffer_store_dwordx4 v[{4*n}:{4*n+3}], v{GA+n}, s[28:31], 0 offen {opol}")
    stamp()
    if stamps:
        a("s_waitcnt vmcnt(0)")
        stamp()
    stamp_store()
    a("s_endpgm")

    a("L_loader:")
    stamp_n[0] = 1
    VD = T + 10
    a(f"v_lshlrev_b32 v{VD}, 4, v{LANE}")
    a("s_sub_u32 s40, s36, 4")
    a("s_mul_i32 s41, s40, 6912")
    for i in range(5):
        a(f"s_add_u32 s{45+i}, s38, {i}")
        a(f"s_cmp_ge_u32 s{45+i}, 5")
        a("s_cselect_b32 s42, 5, 0")
        a(f"s_sub_u32 s{45+i}, s{45+i}, s42")
        a(f"s_mul_i32 s{45+i}, s{45+i}, 82944")
    for j in range(3):
        a(f"s_add_u32 s{50+j}, s37, {j}")
        a(f"s_cmp_ge_u32 s{50+j}, 3")
        a("s_cselect_b32 s42, 3, 0")
        a(f"s_sub_u32 s{50+j}, s{50+j}, s42")
        a(f"s_mul_i32 s{50+j}, s{50+j}, 27648")
        a(f"s_add_u32 s{50+j}, s{50+j}, s41")
    def issue_stage(s):
        cgj, ti = divmod(s, 5)
        a(f"s_add_u32 s43, s{45+ti}, s{50+cgj}")
        a(f"s_add_u32 m0, s41, {RING + (s%4)*SLOT}")
        a("s_add_u32 s44, s43, 4096")
        for n in range(4):
            a(f"buffer_load_dwordx4 v{VD}, s[20:23], s43 offen offset:{n*1024} {wpol} lds")
        a(f"s_add_u32 m0, s41, {RING + (s%4)*SLOT + 4096}")
        a("s_nop 0")
        for n in range(2):
            a(f"buffer_load_dwordx4 v{VD}, s[20:23], s44 offen offset:{n*1024} {wpol} lds")
        a("s_mov_b32 exec_hi, 0xffff")
        a(f"buffer_load_dwordx4 v{VD}, s[20:23], s44 offen offset:2048 {wpol} lds")
        a("s_mov_b32 exec_hi, -1")
    def issue_wo():
        a("s_mul_i32 s43, s40, 10368")
        for b in range(3):
            a(f"s_add_u32 m0, s43, {WO_LDS}")
            a("s_nop 0")
            for n in range(4):
                p = b*4 + n
                if p < 10:
                    a(f"buffer_load_dwordx4 v{VD}, s[24:27], s43 offen offset:{n*1024} lds")
                elif p == 10:
                    a("s_mov_b64 exec, 0xff")
                    a(f"buffer_load_dwordx4 v{VD}, s[24:27], s43 offen offset:{n*1024} lds")
                    a("s_mov_b64 exec, -1")
            a("s_add_u32 s43, s43, 4096")
    issue_stage(0)
    issue_stage(1)
    stamp()
    a("s_waitcnt vmcnt(7)")
    stamp()
    a("s_barrier")
    issue_stage(2)
    issue_stage(3)
    for s in range(1, 15):
        if s <= 12: a("s_waitcnt vmcnt(14)")
        elif s == 13: a("s_waitcnt vmcnt(18)")
        else: a("s_waitcnt vmcnt(11)")
        stamp()
        a("s_barrier")
        stamp()
        if s + 3 <= 14: issue_stage(s+3)
        elif s == 12: issue_wo()
    a("s_waitcnt vmcnt(0)")
    a("s_barrier")
    stamp_store(8)
    a("L_end:")
    a("s_endpgm")
    return wrap(a.text(), 250, 512, LDS_TOTAL, 232)

if __name__ == "__main__":
    out = sys.argv[1]
    kw = {}
    for arg in sys.argv[2:]:
        k, _, v = arg.partition("=")
        if v == "": kw[k] = True
        elif v in ("0", "1"): kw[k] = bool(int(v))
        else: kw[k] = v.replace("+", " ") if v != "none" else ""
    open(out, "w").write(gen(**kw))
```

```python
import sys
from common import *

XREG = 0
RING = 39168
SLOT = 27648
WO_LDS = RING + 3 * SLOT
LDS_TOTAL = WO_LDS + 41472

def gen(stamps=False, rot=True, xpol="nt", wpol="", opol="", ldsout=True, dbg=False, exp=''):
    a = Asm()
    ACC = 0
    AF = 144
    BF = 180
    XA = 188
    WA0, WA1 = 193, 194
    WOA = 195
    OA = 196
    OW = 197
    T = 198
    STV = 224
    TID = 226
    OR_ = 228
    stamp_n = [0]
    def stamp():
        if not stamps: return
        i = stamp_n[0]; stamp_n[0] += 1
        a(f"s_memtime s[60:61]")
        a(f"s_memrealtime s[62:63]")
        a("s_waitcnt lgkmcnt(0)")
        a(f"v_writelane_b32 v{STV}, s60, {i}")
        a(f"v_writelane_b32 v{STV+1}, s62, {i}")
    def stamp_store(dbase=0):
        if not stamps: return
        if dbg:
            a("s_and_b32 s60, s36, 3")
            a("s_cmp_lg_u32 s60, 0")
            a(f"s_cbranch_scc1 L_nodbg{dbase}")
            a(f"v_readlane_b32 s60, v{STV+1}, 0")
            a(f"v_and_b32 v{T}, 63, v{TID}")
            a("s_nop 1")
            a(f"v_subrev_u32 v{T+2}, s60, v{STV+1}")
            a(f"v_lshlrev_b32 v{T}, 2, v{T}")
            a("s_mov_b64 exec, 0xff")
            a(f"buffer_atomic_umax v{T+2}, v{T}, s[32:35], 0 offen offset:{dbase*4}")
            a("s_waitcnt vmcnt(0)")
            a(f"L_nodbg{dbase}:")
            return
        a("s_lshl_b32 s60, s2, 3")
        a("s_add_u32 s60, s60, s36")
        a("s_lshl_b32 s60, s60, 9")
        a(f"v_and_b32 v{T}, 63, v{TID}")
        a(f"v_lshlrev_b32 v{T}, 2, v{T}")
        a(f"v_add_u32 v{T}, s60, v{T}")
        a(f"buffer_store_dword v{STV}, v{T}, s[32:35], 0 offen")
        a(f"buffer_store_dword v{STV+1}, v{T}, s[32:35], 0 offen offset:256")

    a("s_cmp_ge_u32 s2, 250")
    a("s_cbranch_scc1 L_end")
    a("s_load_dwordx8 s[4:11], s[0:1], 0")
    if stamps:
        a(f"s_load_dwordx2 s[14:15], s[0:1], {32 if dbg else 40}")
        a(f"s_memtime s[60:61]")
        a(f"s_memrealtime s[62:63]")
    a(f"v_mov_b32 v{TID}, v0")
    if stamps:
        a(f"v_mov_b32 v{STV}, 0\nv_mov_b32 v{STV+1}, 0")
    LANE = T + 1
    a(f"v_lshrrev_b32 v{T}, 6, v0")
    a(f"v_and_b32 v{LANE}, 63, v0")
    a(f"v_readfirstlane_b32 s36, v{T}")
    XV = T + 4
    a("s_lshl_b32 s41, s2, 7")
    a("s_sub_u32 s41, s41, 8")
    a("s_mul_i32 s41, s41, 288")
    a("s_cmp_eq_u32 s2, 0")
    a("s_cselect_b32 s42, 144, 0")
    a("s_cmp_eq_u32 s2, 125")
    a("s_cselect_b32 s42, 144, s42")
    a(f"v_mov_b32 v{T+10}, 0x7fff0000")
    for i in range(5):
        u, q = T+2, T+3
        if i == 0:
            a(f"v_mul_u32_u24 v{q}, 58255, v0")
            a(f"v_bfe_u32 v{q}, v{q}, 23, 1")
            a(f"v_xor_b32 v{q}, v{q}, v0")
            a(f"v_cmp_gt_u32 vcc, s42, v0")
            a(f"v_lshl_add_u32 v{XV}, v{q}, 4, s41")
            a("s_nop 0")
            a(f"v_cndmask_b32 v{XV}, v{XV}, v{T+10}, vcc")
        else:
            a(f"v_add_u32 v{u}, {512*i}, v0")
            a(f"v_mul_u32_u24 v{q}, 58255, v{u}")
            a(f"v_bfe_u32 v{q}, v{q}, 23, 1")
            a(f"v_xor_b32 v{q}, v{q}, v{u}")
            a(f"v_lshl_add_u32 v{XV+i}, v{q}, 4, s41")
    a(f"v_cmp_gt_u32 vcc, 400, v0")
    a("s_lshl_b32 s43, s36, 10")
    if rot:
        a("s_lshr_b32 s39, s2, 3")
        a("s_mul_i32 s40, s39, 4370")
        a("s_lshr_b32 s40, s40, 16")
        a("s_mul_i32 s40, s40, 15")
        a("s_sub_u32 s39, s39, s40")
        a("s_mul_i32 s37, s39, 13108")
        a("s_lshr_b32 s37, s37, 16")
        a("s_mul_i32 s40, s37, 5")
        a("s_sub_u32 s38, s39, s40")
    else:
        a("s_mov_b32 s37, 0\ns_mov_b32 s38, 0")
    a("s_mov_b64 s[56:57], vcc")
    a("s_mov_b32 s18, 9216000\ns_mov_b32 s19, 0x20000")
    a("s_mov_b32 m0, s43")
    a("s_waitcnt lgkmcnt(0)")
    a("s_mov_b32 s16, s4\ns_mov_b32 s17, s5")
    for i in range(5):
        if i > 0:
            a(f"s_add_u32 m0, s43, {XREG + i*8192}")
        if i == 4:
            a("s_mov_b64 exec, s[56:57]")
            a("s_cbranch_execz L_skipx")
        else:
            a("s_nop 0")
        a(f"buffer_load_dwordx4 v{XV+i}, s[16:19], 0 offen {xpol} lds")
    a("L_skipx:")
    a("s_mov_b64 exec, -1")
    if stamps:
        a(f"v_writelane_b32 v{STV}, s60, 0")
        a(f"v_writelane_b32 v{STV+1}, s62, 0")
        stamp_n[0] = 1
    a("s_mov_b32 s20, s6\ns_mov_b32 s21, s7\ns_mov_b32 s22, 414720\ns_mov_b32 s23, 0x20000")
    a("s_mov_b32 s24, s8\ns_mov_b32 s25, s9\ns_mov_b32 s26, 41472\ns_mov_b32 s27, 0x20000")
    a("s_mov_b32 s28, s10\ns_mov_b32 s29, s11\ns_mov_b32 s30, 9216000\ns_mov_b32 s31, 0x20000")
    if stamps:
        a(f"s_mov_b32 s32, s14\ns_mov_b32 s33, s15\ns_mov_b32 s34, {256 if dbg else 0x1000000}\ns_mov_b32 s35, 0x20000")
    a("s_cmp_ge_u32 s36, 4")
    a("s_cbranch_scc1 L_loader")

    stamp()
    H, TT = T+2, T+3
    a(f"v_lshrrev_b32 v{H}, 5, v{LANE}")
    a(f"v_and_b32 v{TT}, 31, v{LANE}")
    a("s_lshl_b32 s40, s36, 5")
    a("s_add_u32 s40, s40, 8")
    a("s_movk_i32 s44, 288")
    a("s_mul_i32 s45, s37, 96")
    for i in range(5):
        a(f"s_add_u32 s41, s38, {i}")
        a("s_cmp_ge_u32 s41, 5")
        a("s_cselect_b32 s42, 5, 0")
        a("s_sub_u32 s41, s41, s42")
        a("s_lshl_b32 s41, s41, 1")
        a("s_sub_u32 s41, s40, s41")
        a(f"v_add_u32 v{T+8}, s41, v{TT}")
        a(f"v_bfe_u32 v{T+9}, v{T+8}, 3, 1")
        a(f"v_xor_b32 v{T+9}, v{T+9}, v{H}")
        a(f"v_lshl_add_u32 v{T+9}, v{T+9}, 4, s45")
        a(f"v_mad_u32_u24 v{XA+i}, v{T+8}, s44, v{T+9}")
    a("s_cmp_eq_u32 s37, 2")
    a("s_cselect_b32 s46, -2, 1")
    a("s_mul_i32 s46, s46, 96")
    a("s_cmp_eq_u32 s37, 1")
    a("s_cselect_b32 s47, -2, 1")
    a("s_mul_i32 s47, s47, 96")
    a(f"v_bfe_u32 v{T+8}, v{LANE}, 2, 2")
    a(f"v_lshl_add_u32 v{T+8}, v{H}, 3, v{T+8}")
    a("s_movk_i32 s44, 576")
    a(f"v_mul_u32_u24 v{T+8}, s44, v{T+8}")
    a(f"v_bfe_u32 v{T+9}, v{LANE}, 4, 1")
    a("s_movk_i32 s44, 288")
    a(f"v_mad_u32_u24 v{T+8}, v{T+9}, s44, v{T+8}")
    a(f"v_and_b32 v{T+10}, 3, v{LANE}")
    a(f"v_lshl_add_u32 v{T+8}, v{T+10}, 3, v{T+8}")
    a(f"v_add_u32 v{WA0}, {RING}, v{T+8}")
    a(f"v_add_u32 v{WA1}, {RING + 2*SLOT}, v{T+8}")
    a(f"v_bfe_u32 v{T+8}, v{LANE}, 2, 2")
    a(f"v_lshl_add_u32 v{T+8}, v{H}, 2, v{T+8}")
    a(f"v_mul_u32_u24 v{T+8}, s44, v{T+8}")
    a(f"v_lshl_add_u32 v{T+8}, v{T+9}, 7, v{T+8}")
    a(f"v_and_b32 v{T+10}, 1, v{LANE}")
    a(f"v_lshl_add_u32 v{T+8}, v{T+10}, 4, v{T+8}")
    a(f"v_bfe_u32 v{T+10}, v{LANE}, 1, 1")
    a(f"v_lshl_add_u32 v{T+8}, v{T+10}, 3, v{T+8}")
    a(f"v_add_u32 v{WOA}, {WO_LDS}, v{T+8}")
    a("s_lshl_b32 s40, s2, 7")
    a("s_lshl_b32 s41, s36, 5")
    a("s_add_u32 s40, s40, s41")
    if not ldsout:
        a(f"v_add_u32 v{T+8}, s40, v{TT}")
        a(f"v_lshlrev_b32 v{T+9}, 4, v{H}")
        a(f"v_mad_u32_u24 v{OA}, v{T+8}, s44, v{T+9}")
    else:
        a("s_mul_i32 s41, s36, 9216")
        a(f"s_add_u32 s41, s41, {RING}")
        a(f"v_bfe_u32 v{T+9}, v{TT}, 2, 1")
        a(f"v_xor_b32 v{T+9}, v{T+9}, v{H}")
        a(f"v_lshl_add_u32 v{T+9}, v{T+9}, 4, s41")
        a(f"v_mad_u32_u24 v{OW}, v{TT}, s44, v{T+9}")
        a(f"v_lshl_add_u32 v{OR_}, v{LANE}, 4, s41")
        a("s_mul_i32 s48, s40, 288")

    q = []
    def rd(instr, tag):
        a(instr); q.append(tag)
    def need(tags):
        idx = -1
        for i, t in enumerate(q):
            if t in tags: idx = i
        if idx < 0: return
        n = len(q) - 1 - idx
        a(f"s_waitcnt lgkmcnt({min(n,15)})")
        keep = min(n, 15)
        del q[:len(q)-keep]
    def readA(k, j):
        s, ks = divmod(k, 3)
        slot = s % 4
        base = WA0 if slot < 2 else WA1
        off = (slot % 2) * SLOT + ks * 9216 + j * 32
        r = AF + 4*j
        rd(f"ds_read_b64_tr_b16 v[{r}:{r+1}], v{base} offset:{off}", ("A", k, j))
        rd(f"ds_read_b64_tr_b16 v[{r+2}:{r+3}], v{base} offset:{off+2304}", ("A", k, j))
    def readB(k):
        s, ks = divmod(k, 3)
        cgj, ti = divmod(s, 5)
        r = BF + 4*(k % 2)
        rd(f"ds_read_b128 v[{r}:{r+3}], v{XA+ti} offset:{XREG + ks*32}", ("B", k))
        if ks == 2 and cgj < 2:
            a(f"v_add_u32 v{XA+ti}, s{46+cgj}, v{XA+ti}")

    a("s_waitcnt vmcnt(0)")
    a("s_barrier")
    stamp()
    readB(0)
    for j in range(9): readA(0, j)
    for k in range(45):
        nxt = k + 1
        newstage = (nxt % 3 == 0) and nxt < 45
        pending = []
        for j in range(9):
            need({("A", k, j), ("B", k)})
            acc = ACC + 16*j
            cop = "0" if k == 0 else f"v[{acc}:{acc+15}]"
            br = BF + 4*(k % 2)
            a(f"v_mfma_f32_32x32x16_bf16 v[{acc}:{acc+15}], v[{AF+4*j}:{AF+4*j+3}], v[{br}:{br+3}], {cop}")
            if nxt < 45:
                pending.append(j)
                if newstage and j < 2:
                    continue
                if newstage and j == 2:
                    a("s_waitcnt lgkmcnt(0)"); q.clear()
                    a("s_barrier")
                if (j == 0 and not newstage) or (newstage and j == 2):
                    readB(nxt)
                for _ in range(2):
                    if pending:
                        readA(nxt, pending.pop(0))
        assert not pending
    stamp()
    a("s_nop 7")
    a("s_mov_b32 s40, 0x4038aa3b")
    a("s_mov_b32 s41, 0x4038aa3b")
    a("s_mov_b32 s42, 0xbfb8aa3b")
    a("s_mov_b32 s43, 0xbfb8aa3b")
    a("s_mov_b32 s44, 0x42800000")
    Z = AF
    for j in range(9):
        f = ACC + 16*j; g = f + 8
        for r in range(0, 8, 2):
            a(f"v_pk_mul_f32 v[{f+r}:{f+r+1}], v[{f+r}:{f+r+1}], s[40:41]")
            a(f"v_pk_mul_f32 v[{g+r}:{g+r+1}], v[{g+r}:{g+r+1}], s[42:43]")
        for r in range(8):
            a(f"v_min_f32 v{f+r}, s44, v{f+r}")
        for r in range(8):
            a(f"v_exp_f32 v{g+r}, v{g+r}")
        for r in range(8):
            a(f"v_exp_f32 v{f+r}, v{f+r}")
        for r in range(0, 8, 2):
            a(f"v_pk_add_f32 v[{g+r}:{g+r+1}], v[{g+r}:{g+r+1}], 1.0 op_sel_hi:[1,0]")
        for r in range(0, 8, 2):
            a(f"v_pk_fma_f32 v[{g+r}:{g+r+1}], v[{f+r}:{f+r+1}], v[{g+r}:{g+r+1}], v[{g+r}:{g+r+1}]")
        for r in range(8):
            a(f"v_rcp_f32 v{g+r}, v{g+r}")
        a("s_nop 0")
        for r in range(0, 8, 2):
            a(f"v_pk_fma_f32 v[{f+r}:{f+r+1}], v[{f+r}:{f+r+1}], v[{g+r}:{g+r+1}], v[{g+r}:{g+r+1}] neg_lo:[0,0,1] neg_hi:[0,0,1]")
        for r in range(0, 8, 2):
            a(f"v_cvt_pk_bf16_f32 v{Z+4*j+r//2}, v{f+r}, v{f+r+1}")
    stamp()
    a("s_barrier")
    OACC = 0
    OF = 80
    def readO(j, qq):
        r = OF + 4*((j*5+qq) % 10)
        off = j*4608 + (qq*32 if qq < 4 else 256)
        rd(f"ds_read_b64_tr_b16 v[{r}:{r+1}], v{WOA} offset:{off}", ("O", j, qq))
        rd(f"ds_read_b64_tr_b16 v[{r+2}:{r+3}], v{WOA} offset:{off+2304}", ("O", j, qq))
    order = [(j, qq) for j in range(9) for qq in range(5)]
    for i in range(7): readO(*order[i])
    for i, (j, qq) in enumerate(order):
        need({("O", j, qq)})
        acc = OACC + 16*qq
        cop = "0" if j == 0 else f"v[{acc}:{acc+15}]"
        r = OF + 4*((j*5+qq) % 10)
        a(f"v_mfma_f32_32x32x16_bf16 v[{acc}:{acc+15}], v[{r}:{r+3}], v[{Z+4*j}:{Z+4*j+3}], {cop}")
        if i + 7 < len(order): readO(*order[i+7])
    stamp()
    if exp == "mfma":
        a("s_mov_b32 s50, 25")
        a("L_xm:")
        for i in range(8):
            a(f"v_mfma_f32_32x32x16_bf16 v[{80+16*(i%2)}:{95+16*(i%2)}], v[{Z+4*i}:{Z+4*i+3}], v[{Z+4*((i+3)%9)}:{Z+4*((i+3)%9)+3}], v[{80+16*(i%2)}:{95+16*(i%2)}]")
        a("s_sub_u32 s50, s50, 1")
        a("s_cmp_lg_u32 s50, 0")
        a("s_cbranch_scc1 L_xm")
    if exp == "code":
        for i in range(2048):
            a(f"v_mov_b32_e64 v{80+i%16}, v{100+i%16}")
    if exp == "loop":
        a("s_mov_b32 s50, 16")
        a("L_xm:")
        for i in range(128):
            a(f"v_mov_b32_e64 v{80+i%16}, v{100+i%16}")
        a("s_sub_u32 s50, s50, 1")
        a("s_cmp_lg_u32 s50, 0")
        a("s_cbranch_scc1 L_xm")
    P = 120
    if ldsout:
        GA = 160
        GA = T+4
        for n in range(9):
            a(f"v_add_u32 v{T+2}, {64*n}, v{LANE}")
            a(f"v_mul_u32_u24 v{T+3}, 58255, v{T+2}")
            a(f"v_bfe_u32 v{T+3}, v{T+3}, 22, 1")
            a(f"v_xor_b32 v{T+3}, v{T+3}, v{T+2}")
            a(f"v_lshl_add_u32 v{GA+n}, v{T+3}, 4, s48")
    else:
        a("s_nop 7")
        a("s_nop 7")
    n = 0
    for qq in range(5):
        for half in range(2 if qq < 4 else 1):
            src = OACC + 16*qq + 8*half
            p = P + 4*n
            for r in range(4):
                a(f"v_cvt_pk_bf16_f32 v{p+r}, v{src+2*r}, v{src+2*r+1}")
            off = (qq*32 + half*128) if qq < 4 else 256
            if ldsout:
                a(f"ds_write_b128 v{OW}, v[{p}:{p+3}] offset:{off}")
            else:
                a(f"buffer_store_dwordx4 v[{p}:{p+3}], v{OA}, s[28:31], 0 offen offset:{off} {opol}")
            n += 1
    if ldsout:
        a("s_waitcnt lgkmcnt(0)")
        for n in range(9):
            a(f"ds_read_b128 v[{4*n}:{4*n+3}], v{OR_} offset:{n*1024}")
        for n in range(9):
            a(f"s_waitcnt lgkmcnt({8-n})")
            a(f"buffer_store_dwordx4 v[{4*n}:{4*n+3}], v{GA+n}, s[28:31], 0 offen {opol}")
    stamp()
    if stamps:
        a("s_waitcnt vmcnt(0)")
        stamp()
    stamp_store()
    a("s_endpgm")

    a("L_loader:")
    stamp_n[0] = 1
    VD = T + 10
    a(f"v_lshlrev_b32 v{VD}, 4, v{LANE}")
    a("s_sub_u32 s40, s36, 4")
    a("s_mul_i32 s41, s40, 6912")
    for i in range(5):
        a(f"s_add_u32 s{45+i}, s38, {i}")
        a(f"s_cmp_ge_u32 s{45+i}, 5")
        a("s_cselect_b32 s42, 5, 0")
        a(f"s_sub_u32 s{45+i}, s{45+i}, s42")
        a(f"s_mul_i32 s{45+i}, s{45+i}, 82944")
    for j in range(3):
        a(f"s_add_u32 s{50+j}, s37, {j}")
        a(f"s_cmp_ge_u32 s{50+j}, 3")
        a("s_cselect_b32 s42, 3, 0")
        a(f"s_sub_u32 s{50+j}, s{50+j}, s42")
        a(f"s_mul_i32 s{50+j}, s{50+j}, 27648")
        a(f"s_add_u32 s{50+j}, s{50+j}, s41")
    def issue_stage(s):
        cgj, ti = divmod(s, 5)
        a(f"s_add_u32 s43, s{45+ti}, s{50+cgj}")
        a(f"s_add_u32 m0, s41, {RING + (s%4)*SLOT}")
        a("s_add_u32 s44, s43, 4096")
        for n in range(4):
            a(f"buffer_load_dwordx4 v{VD}, s[20:23], s43 offen offset:{n*1024} {wpol} lds")
        a(f"s_add_u32 m0, s41, {RING + (s%4)*SLOT + 4096}")
        a("s_nop 0")
        for n in range(2):
            a(f"buffer_load_dwordx4 v{VD}, s[20:23], s44 offen offset:{n*1024} {wpol} lds")
        a("s_mov_b32 exec_hi, 0xffff")
        a(f"buffer_load_dwordx4 v{VD}, s[20:23], s44 offen offset:2048 {wpol} lds")
        a("s_mov_b32 exec_hi, -1")
    def issue_wo():
        a("s_mul_i32 s43, s40, 10368")
        for b in range(3):
            a(f"s_add_u32 m0, s43, {WO_LDS}")
            a("s_nop 0")
            for n in range(4):
                p = b*4 + n
                if p < 10:
                    a(f"buffer_load_dwordx4 v{VD}, s[24:27], s43 offen offset:{n*1024} lds")
                elif p == 10:
                    a("s_mov_b64 exec, 0xff")
                    a(f"buffer_load_dwordx4 v{VD}, s[24:27], s43 offen offset:{n*1024} lds")
                    a("s_mov_b64 exec, -1")
            a("s_add_u32 s43, s43, 4096")
    issue_stage(0)
    issue_stage(1)
    stamp()
    a("s_waitcnt vmcnt(7)")
    stamp()
    a("s_barrier")
    issue_stage(2)
    issue_stage(3)
    for s in range(1, 15):
        if s <= 12: a("s_waitcnt vmcnt(14)")
        elif s == 13: a("s_waitcnt vmcnt(18)")
        else: a("s_waitcnt vmcnt(11)")
        stamp()
        a("s_barrier")
        stamp()
        if s + 3 <= 14: issue_stage(s+3)
        elif s == 12: issue_wo()
    a("s_waitcnt vmcnt(0)")
    a("s_barrier")
    stamp_store(8)
    a("L_end:")
    a("s_endpgm")
    return wrap(a.text(), 250, 512, LDS_TOTAL, 232)

if __name__ == "__main__":
    out = sys.argv[1]
    kw = {}
    for arg in sys.argv[2:]:
        k, _, v = arg.partition("=")
        if v == "": kw[k] = True
        elif v in ("0", "1"): kw[k] = bool(int(v))
        else: kw[k] = v.replace("+", " ") if v != "none" else ""
    open(out, "w").write(gen(**kw))
```

```python
import sys
from common import *

XREG = 0
RING = 39168
SLOT = 27648
WO_LDS = RING + 3 * SLOT
LDS_TOTAL = WO_LDS + 41472

def gen(stamps=False, rot=True, xpol="nt", wpol="", opol="", ldsout=True, dbg=False, exp='', pf=True):
    a = Asm()
    ACC = 0
    AF = 144
    BF = 180
    XA = 188
    WA0, WA1 = 193, 194
    WOA = 195
    OA = 196
    OW = 197
    T = 198
    STV = 224
    TID = 226
    OR_ = 228
    stamp_n = [0]
    def stamp():
        if not stamps: return
        i = stamp_n[0]; stamp_n[0] += 1
        a(f"s_memtime s[60:61]")
        a(f"s_memrealtime s[62:63]")
        a("s_waitcnt lgkmcnt(0)")
        a(f"v_writelane_b32 v{STV}, s60, {i}")
        a(f"v_writelane_b32 v{STV+1}, s62, {i}")
    def stamp_store(dbase=0):
        if not stamps: return
        if dbg:
            a("s_and_b32 s60, s36, 3")
            a("s_cmp_lg_u32 s60, 0")
            a(f"s_cbranch_scc1 L_nodbg{dbase}")
            a(f"v_readlane_b32 s60, v{STV+1}, 0")
            a(f"v_and_b32 v{T}, 63, v{TID}")
            a("s_nop 1")
            a(f"v_subrev_u32 v{T+2}, s60, v{STV+1}")
            a(f"v_lshlrev_b32 v{T}, 2, v{T}")
            a("s_mov_b64 exec, 0xff")
            a(f"buffer_atomic_umax v{T+2}, v{T}, s[32:35], 0 offen offset:{dbase*4}")
            a("s_waitcnt vmcnt(0)")
            a(f"L_nodbg{dbase}:")
            return
        a("s_lshl_b32 s60, s2, 3")
        a("s_add_u32 s60, s60, s36")
        a("s_lshl_b32 s60, s60, 9")
        a(f"v_and_b32 v{T}, 63, v{TID}")
        a(f"v_lshlrev_b32 v{T}, 2, v{T}")
        a(f"v_add_u32 v{T}, s60, v{T}")
        a(f"buffer_store_dword v{STV}, v{T}, s[32:35], 0 offen")
        a(f"buffer_store_dword v{STV+1}, v{T}, s[32:35], 0 offen offset:256")

    a("s_cmp_ge_u32 s2, 250")
    a("s_cbranch_scc1 L_end")
    a("s_load_dwordx8 s[4:11], s[0:1], 0")
    if pf:
        a("s_getpc_b64 s[50:51]")
        a("L_pc:")
        a(f"v_lshlrev_b32 v1, {7 if exp=='code' else 6}, v0")
        a("v_cmp_gt_u32 vcc, L_code_end-L_pc, v1")
        a("s_and_saveexec_b64 s[52:53], vcc")
        a("s_cbranch_execz L_nopf")
        a("global_load_dword v2, v1, s[50:51]")
        a("L_nopf:")
        a("s_mov_b64 exec, s[52:53]")
    if stamps:
        a(f"s_load_dwordx2 s[14:15], s[0:1], {32 if dbg else 40}")
        a(f"s_memtime s[60:61]")
        a(f"s_memrealtime s[62:63]")
    a(f"v_mov_b32 v{TID}, v0")
    if stamps:
        a(f"v_mov_b32 v{STV}, 0\nv_mov_b32 v{STV+1}, 0")
    LANE = T + 1
    a(f"v_lshrrev_b32 v{T}, 6, v0")
    a(f"v_and_b32 v{LANE}, 63, v0")
    a(f"v_readfirstlane_b32 s36, v{T}")
    XV = T + 4
    a("s_lshl_b32 s41, s2, 7")
    a("s_sub_u32 s41, s41, 8")
    a("s_mul_i32 s41, s41, 288")
    a("s_cmp_eq_u32 s2, 0")
    a("s_cselect_b32 s42, 144, 0")
    a("s_cmp_eq_u32 s2, 125")
    a("s_cselect_b32 s42, 144, s42")
    a(f"v_mov_b32 v{T+10}, 0x7fff0000")
    for i in range(5):
        u, q = T+2, T+3
        if i == 0:
            a(f"v_mul_u32_u24 v{q}, 58255, v0")
            a(f"v_bfe_u32 v{q}, v{q}, 23, 1")
            a(f"v_xor_b32 v{q}, v{q}, v0")
            a(f"v_cmp_gt_u32 vcc, s42, v0")
            a(f"v_lshl_add_u32 v{XV}, v{q}, 4, s41")
            a("s_nop 0")
            a(f"v_cndmask_b32 v{XV}, v{XV}, v{T+10}, vcc")
        else:
            a(f"v_add_u32 v{u}, {512*i}, v0")
            a(f"v_mul_u32_u24 v{q}, 58255, v{u}")
            a(f"v_bfe_u32 v{q}, v{q}, 23, 1")
            a(f"v_xor_b32 v{q}, v{q}, v{u}")
            a(f"v_lshl_add_u32 v{XV+i}, v{q}, 4, s41")
    a(f"v_cmp_gt_u32 vcc, 400, v0")
    a("s_lshl_b32 s43, s36, 10")
    if rot:
        a("s_lshr_b32 s39, s2, 3")
        a("s_mul_i32 s40, s39, 4370")
        a("s_lshr_b32 s40, s40, 16")
        a("s_mul_i32 s40, s40, 15")
        a("s_sub_u32 s39, s39, s40")
        a("s_mul_i32 s37, s39, 13108")
        a("s_lshr_b32 s37, s37, 16")
        a("s_mul_i32 s40, s37, 5")
        a("s_sub_u32 s38, s39, s40")
    else:
        a("s_mov_b32 s37, 0\ns_mov_b32 s38, 0")
    a("s_mov_b64 s[56:57], vcc")
    a("s_mov_b32 s18, 9216000\ns_mov_b32 s19, 0x20000")
    a("s_mov_b32 m0, s43")
    a("s_waitcnt lgkmcnt(0)")
    a("s_mov_b32 s16, s4\ns_mov_b32 s17, s5")
    for i in range(5):
        if i > 0:
            a(f"s_add_u32 m0, s43, {XREG + i*8192}")
        if i == 4:
            a("s_mov_b64 exec, s[56:57]")
            a("s_cbranch_execz L_skipx")
        else:
            a("s_nop 0")
        a(f"buffer_load_dwordx4 v{XV+i}, s[16:19], 0 offen {xpol} lds")
    a("L_skipx:")
    a("s_mov_b64 exec, -1")
    if stamps:
        a(f"v_writelane_b32 v{STV}, s60, 0")
        a(f"v_writelane_b32 v{STV+1}, s62, 0")
        stamp_n[0] = 1
    a("s_mov_b32 s20, s6\ns_mov_b32 s21, s7\ns_mov_b32 s22, 414720\ns_mov_b32 s23, 0x20000")
    a("s_mov_b32 s24, s8\ns_mov_b32 s25, s9\ns_mov_b32 s26, 41472\ns_mov_b32 s27, 0x20000")
    a("s_mov_b32 s28, s10\ns_mov_b32 s29, s11\ns_mov_b32 s30, 9216000\ns_mov_b32 s31, 0x20000")
    if stamps:
        a(f"s_mov_b32 s32, s14\ns_mov_b32 s33, s15\ns_mov_b32 s34, {256 if dbg else 0x1000000}\ns_mov_b32 s35, 0x20000")
    a("s_cmp_ge_u32 s36, 4")
    a("s_cbranch_scc1 L_loader")

    stamp()
    H, TT = T+2, T+3
    a(f"v_lshrrev_b32 v{H}, 5, v{LANE}")
    a(f"v_and_b32 v{TT}, 31, v{LANE}")
    a("s_lshl_b32 s40, s36, 5")
    a("s_add_u32 s40, s40, 8")
    a("s_movk_i32 s44, 288")
    a("s_mul_i32 s45, s37, 96")
    for i in range(5):
        a(f"s_add_u32 s41, s38, {i}")
        a("s_cmp_ge_u32 s41, 5")
        a("s_cselect_b32 s42, 5, 0")
        a("s_sub_u32 s41, s41, s42")
        a("s_lshl_b32 s41, s41, 1")
        a("s_sub_u32 s41, s40, s41")
        a(f"v_add_u32 v{T+8}, s41, v{TT}")
        a(f"v_bfe_u32 v{T+9}, v{T+8}, 3, 1")
        a(f"v_xor_b32 v{T+9}, v{T+9}, v{H}")
        a(f"v_lshl_add_u32 v{T+9}, v{T+9}, 4, s45")
        a(f"v_mad_u32_u24 v{XA+i}, v{T+8}, s44, v{T+9}")
    a("s_cmp_eq_u32 s37, 2")
    a("s_cselect_b32 s46, -2, 1")
    a("s_mul_i32 s46, s46, 96")
    a("s_cmp_eq_u32 s37, 1")
    a("s_cselect_b32 s47, -2, 1")
    a("s_mul_i32 s47, s47, 96")
    a(f"v_bfe_u32 v{T+8}, v{LANE}, 2, 2")
    a(f"v_lshl_add_u32 v{T+8}, v{H}, 3, v{T+8}")
    a("s_movk_i32 s44, 576")
    a(f"v_mul_u32_u24 v{T+8}, s44, v{T+8}")
    a(f"v_bfe_u32 v{T+9}, v{LANE}, 4, 1")
    a("s_movk_i32 s44, 288")
    a(f"v_mad_u32_u24 v{T+8}, v{T+9}, s44, v{T+8}")
    a(f"v_and_b32 v{T+10}, 3, v{LANE}")
    a(f"v_lshl_add_u32 v{T+8}, v{T+10}, 3, v{T+8}")
    a(f"v_add_u32 v{WA0}, {RING}, v{T+8}")
    a(f"v_add_u32 v{WA1}, {RING + 2*SLOT}, v{T+8}")
    a(f"v_bfe_u32 v{T+8}, v{LANE}, 2, 2")
    a(f"v_lshl_add_u32 v{T+8}, v{H}, 2, v{T+8}")
    a(f"v_mul_u32_u24 v{T+8}, s44, v{T+8}")
    a(f"v_lshl_add_u32 v{T+8}, v{T+9}, 7, v{T+8}")
    a(f"v_and_b32 v{T+10}, 1, v{LANE}")
    a(f"v_lshl_add_u32 v{T+8}, v{T+10}, 4, v{T+8}")
    a(f"v_bfe_u32 v{T+10}, v{LANE}, 1, 1")
    a(f"v_lshl_add_u32 v{T+8}, v{T+10}, 3, v{T+8}")
    a(f"v_add_u32 v{WOA}, {WO_LDS}, v{T+8}")
    a("s_lshl_b32 s40, s2, 7")
    a("s_lshl_b32 s41, s36, 5")
    a("s_add_u32 s40, s40, s41")
    if not ldsout:
        a(f"v_add_u32 v{T+8}, s40, v{TT}")
        a(f"v_lshlrev_b32 v{T+9}, 4, v{H}")
        a(f"v_mad_u32_u24 v{OA}, v{T+8}, s44, v{T+9}")
    else:
        a("s_mul_i32 s41, s36, 9216")
        a(f"s_add_u32 s41, s41, {RING}")
        a(f"v_bfe_u32 v{T+9}, v{TT}, 2, 1")
        a(f"v_xor_b32 v{T+9}, v{T+9}, v{H}")
        a(f"v_lshl_add_u32 v{T+9}, v{T+9}, 4, s41")
        a(f"v_mad_u32_u24 v{OW}, v{TT}, s44, v{T+9}")
        a(f"v_lshl_add_u32 v{OR_}, v{LANE}, 4, s41")
        a("s_mul_i32 s48, s40, 288")

    q = []
    def rd(instr, tag):
        a(instr); q.append(tag)
    def need(tags):
        idx = -1
        for i, t in enumerate(q):
            if t in tags: idx = i
        if idx < 0: return
        n = len(q) - 1 - idx
        a(f"s_waitcnt lgkmcnt({min(n,15)})")
        keep = min(n, 15)
        del q[:len(q)-keep]
    def readA(k, j):
        s, ks = divmod(k, 3)
        slot = s % 4
        base = WA0 if slot < 2 else WA1
        off = (slot % 2) * SLOT + ks * 9216 + j * 32
        r = AF + 4*j
        rd(f"ds_read_b64_tr_b16 v[{r}:{r+1}], v{base} offset:{off}", ("A", k, j))
        rd(f"ds_read_b64_tr_b16 v[{r+2}:{r+3}], v{base} offset:{off+2304}", ("A", k, j))
    def readB(k):
        s, ks = divmod(k, 3)
        cgj, ti = divmod(s, 5)
        r = BF + 4*(k % 2)
        rd(f"ds_read_b128 v[{r}:{r+3}], v{XA+ti} offset:{XREG + ks*32}", ("B", k))
        if ks == 2 and cgj < 2:
            a(f"v_add_u32 v{XA+ti}, s{46+cgj}, v{XA+ti}")

    a("s_waitcnt vmcnt(0)")
    a("s_barrier")
    stamp()
    readB(0)
    for j in range(9): readA(0, j)
    for k in range(45):
        nxt = k + 1
        newstage = (nxt % 3 == 0) and nxt < 45
        pending = []
        for j in range(9):
            need({("A", k, j), ("B", k)})
            acc = ACC + 16*j
            cop = "0" if k == 0 else f"v[{acc}:{acc+15}]"
            br = BF + 4*(k % 2)
            a(f"v_mfma_f32_32x32x16_bf16 v[{acc}:{acc+15}], v[{AF+4*j}:{AF+4*j+3}], v[{br}:{br+3}], {cop}")
            if nxt < 45:
                pending.append(j)
                if newstage and j < 2:
                    continue
                if newstage and j == 2:
                    a("s_waitcnt lgkmcnt(0)"); q.clear()
                    a("s_barrier")
                if (j == 0 and not newstage) or (newstage and j == 2):
                    readB(nxt)
                for _ in range(2):
                    if pending:
                        readA(nxt, pending.pop(0))
        assert not pending
    stamp()
    a("s_nop 7")
    a("s_mov_b32 s40, 0x4038aa3b")
    a("s_mov_b32 s41, 0x4038aa3b")
    a("s_mov_b32 s42, 0xbfb8aa3b")
    a("s_mov_b32 s43, 0xbfb8aa3b")
    a("s_mov_b32 s44, 0x42800000")
    Z = AF
    for j in range(9):
        f = ACC + 16*j; g = f + 8
        for r in range(0, 8, 2):
            a(f"v_pk_mul_f32 v[{f+r}:{f+r+1}], v[{f+r}:{f+r+1}], s[40:41]")
            a(f"v_pk_mul_f32 v[{g+r}:{g+r+1}], v[{g+r}:{g+r+1}], s[42:43]")
        for r in range(8):
            a(f"v_min_f32 v{f+r}, s44, v{f+r}")
        for r in range(8):
            a(f"v_exp_f32 v{g+r}, v{g+r}")
        for r in range(8):
            a(f"v_exp_f32 v{f+r}, v{f+r}")
        for r in range(0, 8, 2):
            a(f"v_pk_add_f32 v[{g+r}:{g+r+1}], v[{g+r}:{g+r+1}], 1.0 op_sel_hi:[1,0]")
        for r in range(0, 8, 2):
            a(f"v_pk_fma_f32 v[{g+r}:{g+r+1}], v[{f+r}:{f+r+1}], v[{g+r}:{g+r+1}], v[{g+r}:{g+r+1}]")
        for r in range(8):
            a(f"v_rcp_f32 v{g+r}, v{g+r}")
        a("s_nop 0")
        for r in range(0, 8, 2):
            a(f"v_pk_fma_f32 v[{f+r}:{f+r+1}], v[{f+r}:{f+r+1}], v[{g+r}:{g+r+1}], v[{g+r}:{g+r+1}] neg_lo:[0,0,1] neg_hi:[0,0,1]")
        for r in range(0, 8, 2):
            a(f"v_cvt_pk_bf16_f32 v{Z+4*j+r//2}, v{f+r}, v{f+r+1}")
    stamp()
    a("s_barrier")
    OACC = 0
    OF = 80
    def readO(j, qq):
        r = OF + 4*((j*5+qq) % 10)
        off = j*4608 + (qq*32 if qq < 4 else 256)
        rd(f"ds_read_b64_tr_b16 v[{r}:{r+1}], v{WOA} offset:{off}", ("O", j, qq))
        rd(f"ds_read_b64_tr_b16 v[{r+2}:{r+3}], v{WOA} offset:{off+2304}", ("O", j, qq))
    order = [(j, qq) for j in range(9) for qq in range(5)]
    for i in range(7): readO(*order[i])
    for i, (j, qq) in enumerate(order):
        need({("O", j, qq)})
        acc = OACC + 16*qq
        cop = "0" if j == 0 else f"v[{acc}:{acc+15}]"
        r = OF + 4*((j*5+qq) % 10)
        a(f"v_mfma_f32_32x32x16_bf16 v[{acc}:{acc+15}], v[{r}:{r+3}], v[{Z+4*j}:{Z+4*j+3}], {cop}")
        if i + 7 < len(order): readO(*order[i+7])
    stamp()
    if exp == "mfma":
        a("s_mov_b32 s50, 25")
        a("L_xm:")
        for i in range(8):
            a(f"v_mfma_f32_32x32x16_bf16 v[{80+16*(i%2)}:{95+16*(i%2)}], v[{Z+4*i}:{Z+4*i+3}], v[{Z+4*((i+3)%9)}:{Z+4*((i+3)%9)+3}], v[{80+16*(i%2)}:{95+16*(i%2)}]")
        a("s_sub_u32 s50, s50, 1")
        a("s_cmp_lg_u32 s50, 0")
        a("s_cbranch_scc1 L_xm")
    if exp == "code":
        for i in range(2048):
            a(f"v_mov_b32_e64 v{80+i%16}, v{100+i%16}")
    if exp == "loop":
        a("s_mov_b32 s50, 16")
        a("L_xm:")
        for i in range(128):
            a(f"v_mov_b32_e64 v{80+i%16}, v{100+i%16}")
        a("s_sub_u32 s50, s50, 1")
        a("s_cmp_lg_u32 s50, 0")
        a("s_cbranch_scc1 L_xm")
    P = 120
    if ldsout:
        GA = 160
        GA = T+4
        for n in range(9):
            a(f"v_add_u32 v{T+2}, {64*n}, v{LANE}")
            a(f"v_mul_u32_u24 v{T+3}, 58255, v{T+2}")
            a(f"v_bfe_u32 v{T+3}, v{T+3}, 22, 1")
            a(f"v_xor_b32 v{T+3}, v{T+3}, v{T+2}")
            a(f"v_lshl_add_u32 v{GA+n}, v{T+3}, 4, s48")
    else:
        a("s_nop 7")
        a("s_nop 7")
    n = 0
    for qq in range(5):
        for half in range(2 if qq < 4 else 1):
            src = OACC + 16*qq + 8*half
            p = P + 4*n
            for r in range(4):
                a(f"v_cvt_pk_bf16_f32 v{p+r}, v{src+2*r}, v{src+2*r+1}")
            off = (qq*32 + half*128) if qq < 4 else 256
            if ldsout:
                a(f"ds_write_b128 v{OW}, v[{p}:{p+3}] offset:{off}")
            else:
                a(f"buffer_store_dwordx4 v[{p}:{p+3}], v{OA}, s[28:31], 0 offen offset:{off} {opol}")
            n += 1
    if ldsout:
        a("s_waitcnt lgkmcnt(0)")
        for n in range(9):
            a(f"ds_read_b128 v[{4*n}:{4*n+3}], v{OR_} offset:{n*1024}")
        for n in range(9):
            a(f"s_waitcnt lgkmcnt({8-n})")
            a(f"buffer_store_dwordx4 v[{4*n}:{4*n+3}], v{GA+n}, s[28:31], 0 offen {opol}")
    stamp()
    if stamps:
        a("s_waitcnt vmcnt(0)")
        stamp()
    stamp_store()
    a("s_endpgm")

    a("L_loader:")
    stamp_n[0] = 1
    VD = T + 10
    a(f"v_lshlrev_b32 v{VD}, 4, v{LANE}")
    a("s_sub_u32 s40, s36, 4")
    a("s_mul_i32 s41, s40, 6912")
    for i in range(5):
        a(f"s_add_u32 s{45+i}, s38, {i}")
        a(f"s_cmp_ge_u32 s{45+i}, 5")
        a("s_cselect_b32 s42, 5, 0")
        a(f"s_sub_u32 s{45+i}, s{45+i}, s42")
        a(f"s_mul_i32 s{45+i}, s{45+i}, 82944")
    for j in range(3):
        a(f"s_add_u32 s{50+j}, s37, {j}")
        a(f"s_cmp_ge_u32 s{50+j}, 3")
        a("s_cselect_b32 s42, 3, 0")
        a(f"s_sub_u32 s{50+j}, s{50+j}, s42")
        a(f"s_mul_i32 s{50+j}, s{50+j}, 27648")
        a(f"s_add_u32 s{50+j}, s{50+j}, s41")
    def issue_stage(s):
        cgj, ti = divmod(s, 5)
        a(f"s_add_u32 s43, s{45+ti}, s{50+cgj}")
        a(f"s_add_u32 m0, s41, {RING + (s%4)*SLOT}")
        a("s_add_u32 s44, s43, 4096")
        for n in range(4):
            a(f"buffer_load_dwordx4 v{VD}, s[20:23], s43 offen offset:{n*1024} {wpol} lds")
        a(f"s_add_u32 m0, s41, {RING + (s%4)*SLOT + 4096}")
        a("s_nop 0")
        for n in range(2):
            a(f"buffer_load_dwordx4 v{VD}, s[20:23], s44 offen offset:{n*1024} {wpol} lds")
        a("s_mov_b32 exec_hi, 0xffff")
        a(f"buffer_load_dwordx4 v{VD}, s[20:23], s44 offen offset:2048 {wpol} lds")
        a("s_mov_b32 exec_hi, -1")
    def issue_wo():
        a("s_mul_i32 s43, s40, 10368")
        for b in range(3):
            a(f"s_add_u32 m0, s43, {WO_LDS}")
            a("s_nop 0")
            for n in range(4):
                p = b*4 + n
                if p < 10:
                    a(f"buffer_load_dwordx4 v{VD}, s[24:27], s43 offen offset:{n*1024} lds")
                elif p == 10:
                    a("s_mov_b64 exec, 0xff")
                    a(f"buffer_load_dwordx4 v{VD}, s[24:27], s43 offen offset:{n*1024} lds")
                    a("s_mov_b64 exec, -1")
            a("s_add_u32 s43, s43, 4096")
    issue_stage(0)
    issue_stage(1)
    stamp()
    a("s_waitcnt vmcnt(7)")
    stamp()
    a("s_barrier")
    issue_stage(2)
    issue_stage(3)
    for s in range(1, 15):
        if s <= 12: a("s_waitcnt vmcnt(14)")
        elif s == 13: a("s_waitcnt vmcnt(18)")
        else: a("s_waitcnt vmcnt(11)")
        stamp()
        a("s_barrier")
        stamp()
        if s + 3 <= 14: issue_stage(s+3)
        elif s == 12: issue_wo()
    a("s_waitcnt vmcnt(0)")
    a("s_barrier")
    stamp_store(8)
    a("L_end:")
    a("s_endpgm")
    a("L_code_end:")
    return wrap(a.text(), 250, 512, LDS_TOTAL, 232)

if __name__ == "__main__":
    out = sys.argv[1]
    kw = {}
    for arg in sys.argv[2:]:
        k, _, v = arg.partition("=")
        if v == "": kw[k] = True
        elif v in ("0", "1"): kw[k] = bool(int(v))
        else: kw[k] = v.replace("+", " ") if v != "none" else ""
    open(out, "w").write(gen(**kw))
```

```python
import sys
from common import *

XREG = 0
RING = 39168
SLOT = 27648
WO_LDS = RING + 3 * SLOT
LDS_TOTAL = WO_LDS + 41472

def gen(stamps=False, rot=True, xpol="nt", wpol="", opol="", ldsout=True, dbg=False, exp='', pf=True, spin=''):
    a = Asm()
    ACC = 0
    AF = 144
    BF = 180
    XA = 188
    WA0, WA1 = 193, 194
    WOA = 195
    OA = 196
    OW = 197
    T = 198
    STV = 224
    TID = 226
    OR_ = 228
    stamp_n = [0]
    def stamp():
        if not stamps: return
        i = stamp_n[0]; stamp_n[0] += 1
        a(f"s_memtime s[60:61]")
        a(f"s_memrealtime s[62:63]")
        a("s_waitcnt lgkmcnt(0)")
        a(f"v_writelane_b32 v{STV}, s60, {i}")
        a(f"v_writelane_b32 v{STV+1}, s62, {i}")
    def stamp_store(dbase=0):
        if not stamps: return
        if dbg:
            a("s_and_b32 s60, s36, 3")
            a("s_cmp_lg_u32 s60, 0")
            a(f"s_cbranch_scc1 L_nodbg{dbase}")
            a(f"v_readlane_b32 s60, v{STV+1}, 0")
            a(f"v_and_b32 v{T}, 63, v{TID}")
            a("s_nop 1")
            a(f"v_subrev_u32 v{T+2}, s60, v{STV+1}")
            a(f"v_lshlrev_b32 v{T}, 2, v{T}")
            a("s_mov_b64 exec, 0xff")
            a(f"buffer_atomic_umax v{T+2}, v{T}, s[32:35], 0 offen offset:{dbase*4}")
            a("s_waitcnt vmcnt(0)")
            a(f"L_nodbg{dbase}:")
            return
        a("s_lshl_b32 s60, s2, 3")
        a("s_add_u32 s60, s60, s36")
        a("s_lshl_b32 s60, s60, 9")
        a(f"v_and_b32 v{T}, 63, v{TID}")
        a(f"v_lshlrev_b32 v{T}, 2, v{T}")
        a(f"v_add_u32 v{T}, s60, v{T}")
        a(f"buffer_store_dword v{STV}, v{T}, s[32:35], 0 offen")
        a(f"buffer_store_dword v{STV+1}, v{T}, s[32:35], 0 offen offset:256")

    def spinpt(name):
        if not spin: return
        pt, _, t = spin.partition("@")
        if pt != name: return
        a("L_spin:")
        a("s_memrealtime s[66:67]")
        a("s_waitcnt lgkmcnt(0)")
        a("s_sub_u32 s66, s66, s64")
        a(f"s_cmp_lt_u32 s66, {int(float(t)*100)}")
        a("s_cbranch_scc1 L_spin")
    a("s_cmp_ge_u32 s2, 250")
    a("s_cbranch_scc1 L_end")
    if spin:
        a("s_memrealtime s[64:65]")
    a("s_load_dwordx8 s[4:11], s[0:1], 0")
    if pf:
        a("s_getpc_b64 s[50:51]")
        a("L_pc:")
        a(f"v_lshlrev_b32 v1, {7 if exp=='code' else 6}, v0")
        a("v_cmp_gt_u32 vcc, L_code_end-L_pc, v1")
        a("s_and_saveexec_b64 s[52:53], vcc")
        a("s_cbranch_execz L_nopf")
        a("global_load_dword v2, v1, s[50:51]")
        a("L_nopf:")
        a("s_mov_b64 exec, s[52:53]")
    if stamps:
        a(f"s_load_dwordx2 s[14:15], s[0:1], {32 if dbg else 40}")
        a(f"s_memtime s[60:61]")
        a(f"s_memrealtime s[62:63]")
    a(f"v_mov_b32 v{TID}, v0")
    if stamps:
        a(f"v_mov_b32 v{STV}, 0\nv_mov_b32 v{STV+1}, 0")
    LANE = T + 1
    a(f"v_lshrrev_b32 v{T}, 6, v0")
    a(f"v_and_b32 v{LANE}, 63, v0")
    a(f"v_readfirstlane_b32 s36, v{T}")
    XV = T + 4
    a("s_lshl_b32 s41, s2, 7")
    a("s_sub_u32 s41, s41, 8")
    a("s_mul_i32 s41, s41, 288")
    a("s_cmp_eq_u32 s2, 0")
    a("s_cselect_b32 s42, 144, 0")
    a("s_cmp_eq_u32 s2, 125")
    a("s_cselect_b32 s42, 144, s42")
    a(f"v_mov_b32 v{T+10}, 0x7fff0000")
    for i in range(5):
        u, q = T+2, T+3
        if i == 0:
            a(f"v_mul_u32_u24 v{q}, 58255, v0")
            a(f"v_bfe_u32 v{q}, v{q}, 23, 1")
            a(f"v_xor_b32 v{q}, v{q}, v0")
            a(f"v_cmp_gt_u32 vcc, s42, v0")
            a(f"v_lshl_add_u32 v{XV}, v{q}, 4, s41")
            a("s_nop 0")
            a(f"v_cndmask_b32 v{XV}, v{XV}, v{T+10}, vcc")
        else:
            a(f"v_add_u32 v{u}, {512*i}, v0")
            a(f"v_mul_u32_u24 v{q}, 58255, v{u}")
            a(f"v_bfe_u32 v{q}, v{q}, 23, 1")
            a(f"v_xor_b32 v{q}, v{q}, v{u}")
            a(f"v_lshl_add_u32 v{XV+i}, v{q}, 4, s41")
    a(f"v_cmp_gt_u32 vcc, 400, v0")
    a("s_lshl_b32 s43, s36, 10")
    if rot:
        a("s_lshr_b32 s39, s2, 3")
        a("s_mul_i32 s40, s39, 4370")
        a("s_lshr_b32 s40, s40, 16")
        a("s_mul_i32 s40, s40, 15")
        a("s_sub_u32 s39, s39, s40")
        a("s_mul_i32 s37, s39, 13108")
        a("s_lshr_b32 s37, s37, 16")
        a("s_mul_i32 s40, s37, 5")
        a("s_sub_u32 s38, s39, s40")
    else:
        a("s_mov_b32 s37, 0\ns_mov_b32 s38, 0")
    a("s_mov_b64 s[56:57], vcc")
    a("s_mov_b32 s18, 9216000\ns_mov_b32 s19, 0x20000")
    a("s_mov_b32 m0, s43")
    a("s_waitcnt lgkmcnt(0)")
    a("s_mov_b32 s16, s4\ns_mov_b32 s17, s5")
    for i in range(5):
        if i > 0:
            a(f"s_add_u32 m0, s43, {XREG + i*8192}")
        if i == 4:
            a("s_mov_b64 exec, s[56:57]")
            a("s_cbranch_execz L_skipx")
        else:
            a("s_nop 0")
        a(f"buffer_load_dwordx4 v{XV+i}, s[16:19], 0 offen {xpol} lds")
    a("L_skipx:")
    a("s_mov_b64 exec, -1")
    if stamps:
        a(f"v_writelane_b32 v{STV}, s60, 0")
        a(f"v_writelane_b32 v{STV+1}, s62, 0")
        stamp_n[0] = 1
    a("s_mov_b32 s20, s6\ns_mov_b32 s21, s7\ns_mov_b32 s22, 414720\ns_mov_b32 s23, 0x20000")
    a("s_mov_b32 s24, s8\ns_mov_b32 s25, s9\ns_mov_b32 s26, 41472\ns_mov_b32 s27, 0x20000")
    a("s_mov_b32 s28, s10\ns_mov_b32 s29, s11\ns_mov_b32 s30, 9216000\ns_mov_b32 s31, 0x20000")
    if stamps:
        a(f"s_mov_b32 s32, s14\ns_mov_b32 s33, s15\ns_mov_b32 s34, {256 if dbg else 0x1000000}\ns_mov_b32 s35, 0x20000")
    a("s_cmp_ge_u32 s36, 4")
    a("s_cbranch_scc1 L_loader")

    stamp()
    H, TT = T+2, T+3
    a(f"v_lshrrev_b32 v{H}, 5, v{LANE}")
    a(f"v_and_b32 v{TT}, 31, v{LANE}")
    a("s_lshl_b32 s40, s36, 5")
    a("s_add_u32 s40, s40, 8")
    a("s_movk_i32 s44, 288")
    a("s_mul_i32 s45, s37, 96")
    for i in range(5):
        a(f"s_add_u32 s41, s38, {i}")
        a("s_cmp_ge_u32 s41, 5")
        a("s_cselect_b32 s42, 5, 0")
        a("s_sub_u32 s41, s41, s42")
        a("s_lshl_b32 s41, s41, 1")
        a("s_sub_u32 s41, s40, s41")
        a(f"v_add_u32 v{T+8}, s41, v{TT}")
        a(f"v_bfe_u32 v{T+9}, v{T+8}, 3, 1")
        a(f"v_xor_b32 v{T+9}, v{T+9}, v{H}")
        a(f"v_lshl_add_u32 v{T+9}, v{T+9}, 4, s45")
        a(f"v_mad_u32_u24 v{XA+i}, v{T+8}, s44, v{T+9}")
    a("s_cmp_eq_u32 s37, 2")
    a("s_cselect_b32 s46, -2, 1")
    a("s_mul_i32 s46, s46, 96")
    a("s_cmp_eq_u32 s37, 1")
    a("s_cselect_b32 s47, -2, 1")
    a("s_mul_i32 s47, s47, 96")
    a(f"v_bfe_u32 v{T+8}, v{LANE}, 2, 2")
    a(f"v_lshl_add_u32 v{T+8}, v{H}, 3, v{T+8}")
    a("s_movk_i32 s44, 576")
    a(f"v_mul_u32_u24 v{T+8}, s44, v{T+8}")
    a(f"v_bfe_u32 v{T+9}, v{LANE}, 4, 1")
    a("s_movk_i32 s44, 288")
    a(f"v_mad_u32_u24 v{T+8}, v{T+9}, s44, v{T+8}")
    a(f"v_and_b32 v{T+10}, 3, v{LANE}")
    a(f"v_lshl_add_u32 v{T+8}, v{T+10}, 3, v{T+8}")
    a(f"v_add_u32 v{WA0}, {RING}, v{T+8}")
    a(f"v_add_u32 v{WA1}, {RING + 2*SLOT}, v{T+8}")
    a(f"v_bfe_u32 v{T+8}, v{LANE}, 2, 2")
    a(f"v_lshl_add_u32 v{T+8}, v{H}, 2, v{T+8}")
    a(f"v_mul_u32_u24 v{T+8}, s44, v{T+8}")
    a(f"v_lshl_add_u32 v{T+8}, v{T+9}, 7, v{T+8}")
    a(f"v_and_b32 v{T+10}, 1, v{LANE}")
    a(f"v_lshl_add_u32 v{T+8}, v{T+10}, 4, v{T+8}")
    a(f"v_bfe_u32 v{T+10}, v{LANE}, 1, 1")
    a(f"v_lshl_add_u32 v{T+8}, v{T+10}, 3, v{T+8}")
    a(f"v_add_u32 v{WOA}, {WO_LDS}, v{T+8}")
    a("s_lshl_b32 s40, s2, 7")
    a("s_lshl_b32 s41, s36, 5")
    a("s_add_u32 s40, s40, s41")
    if not ldsout:
        a(f"v_add_u32 v{T+8}, s40, v{TT}")
        a(f"v_lshlrev_b32 v{T+9}, 4, v{H}")
        a(f"v_mad_u32_u24 v{OA}, v{T+8}, s44, v{T+9}")
    else:
        a("s_mul_i32 s41, s36, 9216")
        a(f"s_add_u32 s41, s41, {RING}")
        a(f"v_bfe_u32 v{T+9}, v{TT}, 2, 1")
        a(f"v_xor_b32 v{T+9}, v{T+9}, v{H}")
        a(f"v_lshl_add_u32 v{T+9}, v{T+9}, 4, s41")
        a(f"v_mad_u32_u24 v{OW}, v{TT}, s44, v{T+9}")
        a(f"v_lshl_add_u32 v{OR_}, v{LANE}, 4, s41")
        a("s_mul_i32 s48, s40, 288")

    q = []
    def rd(instr, tag):
        a(instr); q.append(tag)
    def need(tags):
        idx = -1
        for i, t in enumerate(q):
            if t in tags: idx = i
        if idx < 0: return
        n = len(q) - 1 - idx
        a(f"s_waitcnt lgkmcnt({min(n,15)})")
        keep = min(n, 15)
        del q[:len(q)-keep]
    def readA(k, j):
        s, ks = divmod(k, 3)
        slot = s % 4
        base = WA0 if slot < 2 else WA1
        off = (slot % 2) * SLOT + ks * 9216 + j * 32
        r = AF + 4*j
        rd(f"ds_read_b64_tr_b16 v[{r}:{r+1}], v{base} offset:{off}", ("A", k, j))
        rd(f"ds_read_b64_tr_b16 v[{r+2}:{r+3}], v{base} offset:{off+2304}", ("A", k, j))
    def readB(k):
        s, ks = divmod(k, 3)
        cgj, ti = divmod(s, 5)
        r = BF + 4*(k % 2)
        rd(f"ds_read_b128 v[{r}:{r+3}], v{XA+ti} offset:{XREG + ks*32}", ("B", k))
        if ks == 2 and cgj < 2:
            a(f"v_add_u32 v{XA+ti}, s{46+cgj}, v{XA+ti}")

    a("s_waitcnt vmcnt(0)")
    spinpt("b0")
    a("s_barrier")
    stamp()
    readB(0)
    for j in range(9): readA(0, j)
    for k in range(45):
        nxt = k + 1
        newstage = (nxt % 3 == 0) and nxt < 45
        pending = []
        for j in range(9):
            need({("A", k, j), ("B", k)})
            acc = ACC + 16*j
            cop = "0" if k == 0 else f"v[{acc}:{acc+15}]"
            br = BF + 4*(k % 2)
            a(f"v_mfma_f32_32x32x16_bf16 v[{acc}:{acc+15}], v[{AF+4*j}:{AF+4*j+3}], v[{br}:{br+3}], {cop}")
            if nxt < 45:
                pending.append(j)
                if newstage and j < 2:
                    continue
                if newstage and j == 2:
                    a("s_waitcnt lgkmcnt(0)"); q.clear()
                    a("s_barrier")
                if (j == 0 and not newstage) or (newstage and j == 2):
                    readB(nxt)
                for _ in range(2):
                    if pending:
                        readA(nxt, pending.pop(0))
        assert not pending
    stamp()
    spinpt("ml")
    a("s_nop 7")
    a("s_mov_b32 s40, 0x4038aa3b")
    a("s_mov_b32 s41, 0x4038aa3b")
    a("s_mov_b32 s42, 0xbfb8aa3b")
    a("s_mov_b32 s43, 0xbfb8aa3b")
    a("s_mov_b32 s44, 0x42800000")
    Z = AF
    for j in range(9):
        f = ACC + 16*j; g = f + 8
        for r in range(0, 8, 2):
            a(f"v_pk_mul_f32 v[{f+r}:{f+r+1}], v[{f+r}:{f+r+1}], s[40:41]")
            a(f"v_pk_mul_f32 v[{g+r}:{g+r+1}], v[{g+r}:{g+r+1}], s[42:43]")
        for r in range(8):
            a(f"v_min_f32 v{f+r}, s44, v{f+r}")
        for r in range(8):
            a(f"v_exp_f32 v{g+r}, v{g+r}")
        for r in range(8):
            a(f"v_exp_f32 v{f+r}, v{f+r}")
        for r in range(0, 8, 2):
            a(f"v_pk_add_f32 v[{g+r}:{g+r+1}], v[{g+r}:{g+r+1}], 1.0 op_sel_hi:[1,0]")
        for r in range(0, 8, 2):
            a(f"v_pk_fma_f32 v[{g+r}:{g+r+1}], v[{f+r}:{f+r+1}], v[{g+r}:{g+r+1}], v[{g+r}:{g+r+1}]")
        for r in range(8):
            a(f"v_rcp_f32 v{g+r}, v{g+r}")
        a("s_nop 0")
        for r in range(0, 8, 2):
            a(f"v_pk_fma_f32 v[{f+r}:{f+r+1}], v[{f+r}:{f+r+1}], v[{g+r}:{g+r+1}], v[{g+r}:{g+r+1}] neg_lo:[0,0,1] neg_hi:[0,0,1]")
        for r in range(0, 8, 2):
            a(f"v_cvt_pk_bf16_f32 v{Z+4*j+r//2}, v{f+r}, v{f+r+1}")
    stamp()
    a("s_barrier")
    OACC = 0
    OF = 80
    def readO(j, qq):
        r = OF + 4*((j*5+qq) % 10)
        off = j*4608 + (qq*32 if qq < 4 else 256)
        rd(f"ds_read_b64_tr_b16 v[{r}:{r+1}], v{WOA} offset:{off}", ("O", j, qq))
        rd(f"ds_read_b64_tr_b16 v[{r+2}:{r+3}], v{WOA} offset:{off+2304}", ("O", j, qq))
    order = [(j, qq) for j in range(9) for qq in range(5)]
    for i in range(7): readO(*order[i])
    for i, (j, qq) in enumerate(order):
        need({("O", j, qq)})
        acc = OACC + 16*qq
        cop = "0" if j == 0 else f"v[{acc}:{acc+15}]"
        r = OF + 4*((j*5+qq) % 10)
        a(f"v_mfma_f32_32x32x16_bf16 v[{acc}:{acc+15}], v[{r}:{r+3}], v[{Z+4*j}:{Z+4*j+3}], {cop}")
        if i + 7 < len(order): readO(*order[i+7])
    stamp()
    if exp == "mfma":
        a("s_mov_b32 s50, 25")
        a("L_xm:")
        for i in range(8):
            a(f"v_mfma_f32_32x32x16_bf16 v[{80+16*(i%2)}:{95+16*(i%2)}], v[{Z+4*i}:{Z+4*i+3}], v[{Z+4*((i+3)%9)}:{Z+4*((i+3)%9)+3}], v[{80+16*(i%2)}:{95+16*(i%2)}]")
        a("s_sub_u32 s50, s50, 1")
        a("s_cmp_lg_u32 s50, 0")
        a("s_cbranch_scc1 L_xm")
    if exp == "code":
        for i in range(2048):
            a(f"v_mov_b32_e64 v{80+i%16}, v{100+i%16}")
    if exp == "loop":
        a("s_mov_b32 s50, 16")
        a("L_xm:")
        for i in range(128):
            a(f"v_mov_b32_e64 v{80+i%16}, v{100+i%16}")
        a("s_sub_u32 s50, s50, 1")
        a("s_cmp_lg_u32 s50, 0")
        a("s_cbranch_scc1 L_xm")
    spinpt("g2")
    P = 120
    if ldsout:
        GA = 160
        GA = T+4
        for n in range(9):
            a(f"v_add_u32 v{T+2}, {64*n}, v{LANE}")
            a(f"v_mul_u32_u24 v{T+3}, 58255, v{T+2}")
            a(f"v_bfe_u32 v{T+3}, v{T+3}, 22, 1")
            a(f"v_xor_b32 v{T+3}, v{T+3}, v{T+2}")
            a(f"v_lshl_add_u32 v{GA+n}, v{T+3}, 4, s48")
    else:
        a("s_nop 7")
        a("s_nop 7")
    n = 0
    for qq in range(5):
        for half in range(2 if qq < 4 else 1):
            src = OACC + 16*qq + 8*half
            p = P + 4*n
            for r in range(4):
                a(f"v_cvt_pk_bf16_f32 v{p+r}, v{src+2*r}, v{src+2*r+1}")
            off = (qq*32 + half*128) if qq < 4 else 256
            if ldsout:
                a(f"ds_write_b128 v{OW}, v[{p}:{p+3}] offset:{off}")
            else:
                a(f"buffer_store_dwordx4 v[{p}:{p+3}], v{OA}, s[28:31], 0 offen offset:{off} {opol}")
            n += 1
    if ldsout:
        a("s_waitcnt lgkmcnt(0)")
        for n in range(9):
            a(f"ds_read_b128 v[{4*n}:{4*n+3}], v{OR_} offset:{n*1024}")
        for n in range(9):
            a(f"s_waitcnt lgkmcnt({8-n})")
            a(f"buffer_store_dwordx4 v[{4*n}:{4*n+3}], v{GA+n}, s[28:31], 0 offen {opol}")
    stamp()
    if stamps:
        a("s_waitcnt vmcnt(0)")
        stamp()
    if spin.startswith("end"):
        a("s_waitcnt vmcnt(0)")
    spinpt("end")
    stamp_store()
    a("s_endpgm")

    a("L_loader:")
    stamp_n[0] = 1
    VD = T + 10
    a(f"v_lshlrev_b32 v{VD}, 4, v{LANE}")
    a("s_sub_u32 s40, s36, 4")
    a("s_mul_i32 s41, s40, 6912")
    for i in range(5):
        a(f"s_add_u32 s{45+i}, s38, {i}")
        a(f"s_cmp_ge_u32 s{45+i}, 5")
        a("s_cselect_b32 s42, 5, 0")
        a(f"s_sub_u32 s{45+i}, s{45+i}, s42")
        a(f"s_mul_i32 s{45+i}, s{45+i}, 82944")
    for j in range(3):
        a(f"s_add_u32 s{50+j}, s37, {j}")
        a(f"s_cmp_ge_u32 s{50+j}, 3")
        a("s_cselect_b32 s42, 3, 0")
        a(f"s_sub_u32 s{50+j}, s{50+j}, s42")
        a(f"s_mul_i32 s{50+j}, s{50+j}, 27648")
        a(f"s_add_u32 s{50+j}, s{50+j}, s41")
    def issue_stage(s):
        cgj, ti = divmod(s, 5)
        a(f"s_add_u32 s43, s{45+ti}, s{50+cgj}")
        a(f"s_add_u32 m0, s41, {RING + (s%4)*SLOT}")
        a("s_add_u32 s44, s43, 4096")
        for n in range(4):
            a(f"buffer_load_dwordx4 v{VD}, s[20:23], s43 offen offset:{n*1024} {wpol} lds")
        a(f"s_add_u32 m0, s41, {RING + (s%4)*SLOT + 4096}")
        a("s_nop 0")
        for n in range(2):
            a(f"buffer_load_dwordx4 v{VD}, s[20:23], s44 offen offset:{n*1024} {wpol} lds")
        a("s_mov_b32 exec_hi, 0xffff")
        a(f"buffer_load_dwordx4 v{VD}, s[20:23], s44 offen offset:2048 {wpol} lds")
        a("s_mov_b32 exec_hi, -1")
    def issue_wo():
        a("s_mul_i32 s43, s40, 10368")
        for b in range(3):
            a(f"s_add_u32 m0, s43, {WO_LDS}")
            a("s_nop 0")
            for n in range(4):
                p = b*4 + n
                if p < 10:
                    a(f"buffer_load_dwordx4 v{VD}, s[24:27], s43 offen offset:{n*1024} lds")
                elif p == 10:
                    a("s_mov_b64 exec, 0xff")
                    a(f"buffer_load_dwordx4 v{VD}, s[24:27], s43 offen offset:{n*1024} lds")
                    a("s_mov_b64 exec, -1")
            a("s_add_u32 s43, s43, 4096")
    issue_stage(0)
    issue_stage(1)
    stamp()
    a("s_waitcnt vmcnt(7)")
    stamp()
    a("s_barrier")
    issue_stage(2)
    issue_stage(3)
    for s in range(1, 15):
        if s <= 12: a("s_waitcnt vmcnt(14)")
        elif s == 13: a("s_waitcnt vmcnt(18)")
        else: a("s_waitcnt vmcnt(11)")
        stamp()
        a("s_barrier")
        stamp()
        if s + 3 <= 14: issue_stage(s+3)
        elif s == 12: issue_wo()
    a("s_waitcnt vmcnt(0)")
    a("s_barrier")
    stamp_store(8)
    a("L_end:")
    a("s_endpgm")
    a("L_code_end:")
    return wrap(a.text(), 250, 512, LDS_TOTAL, 232)

if __name__ == "__main__":
    out = sys.argv[1]
    kw = {}
    for arg in sys.argv[2:]:
        k, _, v = arg.partition("=")
        if v == "": kw[k] = True
        elif v in ("0", "1"): kw[k] = bool(int(v))
        else: kw[k] = v.replace("+", " ") if v != "none" else ""
    open(out, "w").write(gen(**kw))
```

```python
import sys
from common import *

XREG = 0
RING = 39168
SLOT = 27648
WO_LDS = RING + 3 * SLOT
LDS_TOTAL = WO_LDS + 41472

def gen(stamps=False, rot=True, xpol="nt", wpol="", opol="", ldsout=True, dbg=False, exp='', pf=True, spin=''):
    a = Asm()
    ACC = 0
    AF = 144
    BF = 180
    XA = 188
    WA0, WA1 = 193, 194
    WOA = 195
    OA = 196
    OW = 197
    T = 198
    STV = 224
    TID = 226
    OR_ = 228
    stamp_n = [0]
    def stamp():
        if not stamps: return
        i = stamp_n[0]; stamp_n[0] += 1
        a(f"s_memtime s[60:61]")
        a(f"s_memrealtime s[62:63]")
        a("s_waitcnt lgkmcnt(0)")
        a(f"v_writelane_b32 v{STV}, s60, {i}")
        a(f"v_writelane_b32 v{STV+1}, s62, {i}")
    def stamp_store(dbase=0):
        if not stamps: return
        if dbg:
            a("s_and_b32 s60, s36, 3")
            a("s_cmp_lg_u32 s60, 0")
            a(f"s_cbranch_scc1 L_nodbg{dbase}")
            a(f"v_readlane_b32 s60, v{STV+1}, 0")
            a(f"v_and_b32 v{T}, 63, v{TID}")
            a("s_nop 1")
            a(f"v_subrev_u32 v{T+2}, s60, v{STV+1}")
            a(f"v_lshlrev_b32 v{T}, 2, v{T}")
            a("s_mov_b64 exec, 0xff")
            a(f"buffer_atomic_umax v{T+2}, v{T}, s[32:35], 0 offen offset:{dbase*4}")
            a("s_waitcnt vmcnt(0)")
            a(f"L_nodbg{dbase}:")
            return
        a("s_lshl_b32 s60, s2, 3")
        a("s_add_u32 s60, s60, s36")
        a("s_lshl_b32 s60, s60, 9")
        a(f"v_and_b32 v{T}, 63, v{TID}")
        a(f"v_lshlrev_b32 v{T}, 2, v{T}")
        a(f"v_add_u32 v{T}, s60, v{T}")
        a(f"buffer_store_dword v{STV}, v{T}, s[32:35], 0 offen")
        a(f"buffer_store_dword v{STV+1}, v{T}, s[32:35], 0 offen offset:256")

    def spinpt(name):
        if not spin: return
        pt, _, t = spin.partition("@")
        if pt == "gend" and name == "end":
            a("s_load_dwordx2 s[70:71], s[0:1], 32")
            a("s_waitcnt lgkmcnt(0)")
            a("v_mov_b32 v1, 0")
            a("global_load_dword v2, v1, s[70:71] sc0 sc1")
            a("s_waitcnt vmcnt(0)")
            a("v_readfirstlane_b32 s64, v2")
            a("s_not_b32 s64, s64")
        elif pt != name: return
        a("L_spin:")
        a("s_memrealtime s[66:67]")
        a("s_waitcnt lgkmcnt(0)")
        a("s_sub_u32 s66, s66, s64")
        a(f"s_cmp_lt_u32 s66, {int(float(t)*100)}")
        a("s_cbranch_scc1 L_spin")
    a("s_cmp_ge_u32 s2, 250")
    a("s_cbranch_scc1 L_end")
    if spin:
        a("s_memrealtime s[64:65]")
    a("s_load_dwordx8 s[4:11], s[0:1], 0")
    if pf:
        a("s_getpc_b64 s[50:51]")
        a("L_pc:")
        a(f"v_lshlrev_b32 v1, {7 if exp=='code' else 6}, v0")
        a("v_cmp_gt_u32 vcc, L_code_end-L_pc, v1")
        a("s_and_saveexec_b64 s[52:53], vcc")
        a("s_cbranch_execz L_nopf")
        a("global_load_dword v2, v1, s[50:51]")
        a("L_nopf:")
        a("s_mov_b64 exec, s[52:53]")
    if stamps:
        a(f"s_load_dwordx2 s[14:15], s[0:1], {32 if dbg else 40}")
        a(f"s_memtime s[60:61]")
        a(f"s_memrealtime s[62:63]")
    a(f"v_mov_b32 v{TID}, v0")
    if stamps:
        a(f"v_mov_b32 v{STV}, 0\nv_mov_b32 v{STV+1}, 0")
    LANE = T + 1
    a(f"v_lshrrev_b32 v{T}, 6, v0")
    a(f"v_and_b32 v{LANE}, 63, v0")
    a(f"v_readfirstlane_b32 s36, v{T}")
    XV = T + 4
    a("s_lshl_b32 s41, s2, 7")
    a("s_sub_u32 s41, s41, 8")
    a("s_mul_i32 s41, s41, 288")
    a("s_cmp_eq_u32 s2, 0")
    a("s_cselect_b32 s42, 144, 0")
    a("s_cmp_eq_u32 s2, 125")
    a("s_cselect_b32 s42, 144, s42")
    a(f"v_mov_b32 v{T+10}, 0x7fff0000")
    for i in range(5):
        u, q = T+2, T+3
        if i == 0:
            a(f"v_mul_u32_u24 v{q}, 58255, v0")
            a(f"v_bfe_u32 v{q}, v{q}, 23, 1")
            a(f"v_xor_b32 v{q}, v{q}, v0")
            a(f"v_cmp_gt_u32 vcc, s42, v0")
            a(f"v_lshl_add_u32 v{XV}, v{q}, 4, s41")
            a("s_nop 0")
            a(f"v_cndmask_b32 v{XV}, v{XV}, v{T+10}, vcc")
        else:
            a(f"v_add_u32 v{u}, {512*i}, v0")
            a(f"v_mul_u32_u24 v{q}, 58255, v{u}")
            a(f"v_bfe_u32 v{q}, v{q}, 23, 1")
            a(f"v_xor_b32 v{q}, v{q}, v{u}")
            a(f"v_lshl_add_u32 v{XV+i}, v{q}, 4, s41")
    a(f"v_cmp_gt_u32 vcc, 400, v0")
    a("s_lshl_b32 s43, s36, 10")
    if rot:
        a("s_lshr_b32 s39, s2, 3")
        a("s_mul_i32 s40, s39, 4370")
        a("s_lshr_b32 s40, s40, 16")
        a("s_mul_i32 s40, s40, 15")
        a("s_sub_u32 s39, s39, s40")
        a("s_mul_i32 s37, s39, 13108")
        a("s_lshr_b32 s37, s37, 16")
        a("s_mul_i32 s40, s37, 5")
        a("s_sub_u32 s38, s39, s40")
    else:
        a("s_mov_b32 s37, 0\ns_mov_b32 s38, 0")
    a("s_mov_b64 s[56:57], vcc")
    a("s_mov_b32 s18, 9216000\ns_mov_b32 s19, 0x20000")
    a("s_mov_b32 m0, s43")
    a("s_waitcnt lgkmcnt(0)")
    a("s_mov_b32 s16, s4\ns_mov_b32 s17, s5")
    for i in range(5):
        if i > 0:
            a(f"s_add_u32 m0, s43, {XREG + i*8192}")
        if i == 4:
            a("s_mov_b64 exec, s[56:57]")
            a("s_cbranch_execz L_skipx")
        else:
            a("s_nop 0")
        a(f"buffer_load_dwordx4 v{XV+i}, s[16:19], 0 offen {xpol} lds")
    a("L_skipx:")
    a("s_mov_b64 exec, -1")
    if stamps:
        a(f"v_writelane_b32 v{STV}, s60, 0")
        a(f"v_writelane_b32 v{STV+1}, s62, 0")
        stamp_n[0] = 1
    a("s_mov_b32 s20, s6\ns_mov_b32 s21, s7\ns_mov_b32 s22, 414720\ns_mov_b32 s23, 0x20000")
    a("s_mov_b32 s24, s8\ns_mov_b32 s25, s9\ns_mov_b32 s26, 41472\ns_mov_b32 s27, 0x20000")
    a("s_mov_b32 s28, s10\ns_mov_b32 s29, s11\ns_mov_b32 s30, 9216000\ns_mov_b32 s31, 0x20000")
    if stamps:
        a(f"s_mov_b32 s32, s14\ns_mov_b32 s33, s15\ns_mov_b32 s34, {256 if dbg else 0x1000000}\ns_mov_b32 s35, 0x20000")
    a("s_cmp_ge_u32 s36, 4")
    a("s_cbranch_scc1 L_loader")

    stamp()
    H, TT = T+2, T+3
    a(f"v_lshrrev_b32 v{H}, 5, v{LANE}")
    a(f"v_and_b32 v{TT}, 31, v{LANE}")
    a("s_lshl_b32 s40, s36, 5")
    a("s_add_u32 s40, s40, 8")
    a("s_movk_i32 s44, 288")
    a("s_mul_i32 s45, s37, 96")
    for i in range(5):
        a(f"s_add_u32 s41, s38, {i}")
        a("s_cmp_ge_u32 s41, 5")
        a("s_cselect_b32 s42, 5, 0")
        a("s_sub_u32 s41, s41, s42")
        a("s_lshl_b32 s41, s41, 1")
        a("s_sub_u32 s41, s40, s41")
        a(f"v_add_u32 v{T+8}, s41, v{TT}")
        a(f"v_bfe_u32 v{T+9}, v{T+8}, 3, 1")
        a(f"v_xor_b32 v{T+9}, v{T+9}, v{H}")
        a(f"v_lshl_add_u32 v{T+9}, v{T+9}, 4, s45")
        a(f"v_mad_u32_u24 v{XA+i}, v{T+8}, s44, v{T+9}")
    a("s_cmp_eq_u32 s37, 2")
    a("s_cselect_b32 s46, -2, 1")
    a("s_mul_i32 s46, s46, 96")
    a("s_cmp_eq_u32 s37, 1")
    a("s_cselect_b32 s47, -2, 1")
    a("s_mul_i32 s47, s47, 96")
    a(f"v_bfe_u32 v{T+8}, v{LANE}, 2, 2")
    a(f"v_lshl_add_u32 v{T+8}, v{H}, 3, v{T+8}")
    a("s_movk_i32 s44, 576")
    a(f"v_mul_u32_u24 v{T+8}, s44, v{T+8}")
    a(f"v_bfe_u32 v{T+9}, v{LANE}, 4, 1")
    a("s_movk_i32 s44, 288")
    a(f"v_mad_u32_u24 v{T+8}, v{T+9}, s44, v{T+8}")
    a(f"v_and_b32 v{T+10}, 3, v{LANE}")
    a(f"v_lshl_add_u32 v{T+8}, v{T+10}, 3, v{T+8}")
    a(f"v_add_u32 v{WA0}, {RING}, v{T+8}")
    a(f"v_add_u32 v{WA1}, {RING + 2*SLOT}, v{T+8}")
    a(f"v_bfe_u32 v{T+8}, v{LANE}, 2, 2")
    a(f"v_lshl_add_u32 v{T+8}, v{H}, 2, v{T+8}")
    a(f"v_mul_u32_u24 v{T+8}, s44, v{T+8}")
    a(f"v_lshl_add_u32 v{T+8}, v{T+9}, 7, v{T+8}")
    a(f"v_and_b32 v{T+10}, 1, v{LANE}")
    a(f"v_lshl_add_u32 v{T+8}, v{T+10}, 4, v{T+8}")
    a(f"v_bfe_u32 v{T+10}, v{LANE}, 1, 1")
    a(f"v_lshl_add_u32 v{T+8}, v{T+10}, 3, v{T+8}")
    a(f"v_add_u32 v{WOA}, {WO_LDS}, v{T+8}")
    a("s_lshl_b32 s40, s2, 7")
    a("s_lshl_b32 s41, s36, 5")
    a("s_add_u32 s40, s40, s41")
    if not ldsout:
        a(f"v_add_u32 v{T+8}, s40, v{TT}")
        a(f"v_lshlrev_b32 v{T+9}, 4, v{H}")
        a(f"v_mad_u32_u24 v{OA}, v{T+8}, s44, v{T+9}")
    else:
        a("s_mul_i32 s41, s36, 9216")
        a(f"s_add_u32 s41, s41, {RING}")
        a(f"v_bfe_u32 v{T+9}, v{TT}, 2, 1")
        a(f"v_xor_b32 v{T+9}, v{T+9}, v{H}")
        a(f"v_lshl_add_u32 v{T+9}, v{T+9}, 4, s41")
        a(f"v_mad_u32_u24 v{OW}, v{TT}, s44, v{T+9}")
        a(f"v_lshl_add_u32 v{OR_}, v{LANE}, 4, s41")
        a("s_mul_i32 s48, s40, 288")

    q = []
    def rd(instr, tag):
        a(instr); q.append(tag)
    def need(tags):
        idx = -1
        for i, t in enumerate(q):
            if t in tags: idx = i
        if idx < 0: return
        n = len(q) - 1 - idx
        a(f"s_waitcnt lgkmcnt({min(n,15)})")
        keep = min(n, 15)
        del q[:len(q)-keep]
    def readA(k, j):
        s, ks = divmod(k, 3)
        slot = s % 4
        base = WA0 if slot < 2 else WA1
        off = (slot % 2) * SLOT + ks * 9216 + j * 32
        r = AF + 4*j
        rd(f"ds_read_b64_tr_b16 v[{r}:{r+1}], v{base} offset:{off}", ("A", k, j))
        rd(f"ds_read_b64_tr_b16 v[{r+2}:{r+3}], v{base} offset:{off+2304}", ("A", k, j))
    def readB(k):
        s, ks = divmod(k, 3)
        cgj, ti = divmod(s, 5)
        r = BF + 4*(k % 2)
        rd(f"ds_read_b128 v[{r}:{r+3}], v{XA+ti} offset:{XREG + ks*32}", ("B", k))
        if ks == 2 and cgj < 2:
            a(f"v_add_u32 v{XA+ti}, s{46+cgj}, v{XA+ti}")

    a("s_waitcnt vmcnt(0)")
    spinpt("b0")
    if spin.startswith("gend"):
        a("s_load_dwordx2 s[70:71], s[0:1], 32")
        a("s_not_b32 s66, s64")
        a("v_mov_b32 v1, 0")
        a("v_mov_b32 v2, s66")
        a("s_waitcnt lgkmcnt(0)")
        a("s_cmp_lg_u32 s36, 0")
        a("s_cbranch_scc1 L_noat")
        a("s_mov_b64 exec, 1")
        a("global_atomic_umax v1, v2, s[70:71]")
        a("s_mov_b64 exec, -1")
        a("s_nop 7")
        a("L_noat:")
    a("s_barrier")
    stamp()
    readB(0)
    for j in range(9): readA(0, j)
    for k in range(45):
        nxt = k + 1
        newstage = (nxt % 3 == 0) and nxt < 45
        pending = []
        for j in range(9):
            need({("A", k, j), ("B", k)})
            acc = ACC + 16*j
            cop = "0" if k == 0 else f"v[{acc}:{acc+15}]"
            br = BF + 4*(k % 2)
            a(f"v_mfma_f32_32x32x16_bf16 v[{acc}:{acc+15}], v[{AF+4*j}:{AF+4*j+3}], v[{br}:{br+3}], {cop}")
            if nxt < 45:
                pending.append(j)
                if newstage and j < 2:
                    continue
                if newstage and j == 2:
                    a("s_waitcnt lgkmcnt(0)"); q.clear()
                    a("s_barrier")
                if (j == 0 and not newstage) or (newstage and j == 2):
                    readB(nxt)
                for _ in range(2):
                    if pending:
                        readA(nxt, pending.pop(0))
        assert not pending
    stamp()
    spinpt("ml")
    a("s_nop 7")
    a("s_mov_b32 s40, 0x4038aa3b")
    a("s_mov_b32 s41, 0x4038aa3b")
    a("s_mov_b32 s42, 0xbfb8aa3b")
    a("s_mov_b32 s43, 0xbfb8aa3b")
    a("s_mov_b32 s44, 0x42800000")
    Z = AF
    for j in range(9):
        f = ACC + 16*j; g = f + 8
        for r in range(0, 8, 2):
            a(f"v_pk_mul_f32 v[{f+r}:{f+r+1}], v[{f+r}:{f+r+1}], s[40:41]")
            a(f"v_pk_mul_f32 v[{g+r}:{g+r+1}], v[{g+r}:{g+r+1}], s[42:43]")
        for r in range(8):
            a(f"v_min_f32 v{f+r}, s44, v{f+r}")
        for r in range(8):
            a(f"v_exp_f32 v{g+r}, v{g+r}")
        for r in range(8):
            a(f"v_exp_f32 v{f+r}, v{f+r}")
        for r in range(0, 8, 2):
            a(f"v_pk_add_f32 v[{g+r}:{g+r+1}], v[{g+r}:{g+r+1}], 1.0 op_sel_hi:[1,0]")
        for r in range(0, 8, 2):
            a(f"v_pk_fma_f32 v[{g+r}:{g+r+1}], v[{f+r}:{f+r+1}], v[{g+r}:{g+r+1}], v[{g+r}:{g+r+1}]")
        for r in range(8):
            a(f"v_rcp_f32 v{g+r}, v{g+r}")
        a("s_nop 0")
        for r in range(0, 8, 2):
            a(f"v_pk_fma_f32 v[{f+r}:{f+r+1}], v[{f+r}:{f+r+1}], v[{g+r}:{g+r+1}], v[{g+r}:{g+r+1}] neg_lo:[0,0,1] neg_hi:[0,0,1]")
        for r in range(0, 8, 2):
            a(f"v_cvt_pk_bf16_f32 v{Z+4*j+r//2}, v{f+r}, v{f+r+1}")
    stamp()
    a("s_barrier")
    OACC = 0
    OF = 80
    def readO(j, qq):
        r = OF + 4*((j*5+qq) % 10)
        off = j*4608 + (qq*32 if qq < 4 else 256)
        rd(f"ds_read_b64_tr_b16 v[{r}:{r+1}], v{WOA} offset:{off}", ("O", j, qq))
        rd(f"ds_read_b64_tr_b16 v[{r+2}:{r+3}], v{WOA} offset:{off+2304}", ("O", j, qq))
    order = [(j, qq) for j in range(9) for qq in range(5)]
    for i in range(7): readO(*order[i])
    for i, (j, qq) in enumerate(order):
        need({("O", j, qq)})
        acc = OACC + 16*qq
        cop = "0" if j == 0 else f"v[{acc}:{acc+15}]"
        r = OF + 4*((j*5+qq) % 10)
        a(f"v_mfma_f32_32x32x16_bf16 v[{acc}:{acc+15}], v[{r}:{r+3}], v[{Z+4*j}:{Z+4*j+3}], {cop}")
        if i + 7 < len(order): readO(*order[i+7])
    stamp()
    if exp == "mfma":
        a("s_mov_b32 s50, 25")
        a("L_xm:")
        for i in range(8):
            a(f"v_mfma_f32_32x32x16_bf16 v[{80+16*(i%2)}:{95+16*(i%2)}], v[{Z+4*i}:{Z+4*i+3}], v[{Z+4*((i+3)%9)}:{Z+4*((i+3)%9)+3}], v[{80+16*(i%2)}:{95+16*(i%2)}]")
        a("s_sub_u32 s50, s50, 1")
        a("s_cmp_lg_u32 s50, 0")
        a("s_cbranch_scc1 L_xm")
    if exp == "code":
        for i in range(2048):
            a(f"v_mov_b32_e64 v{80+i%16}, v{100+i%16}")
    if exp == "loop":
        a("s_mov_b32 s50, 16")
        a("L_xm:")
        for i in range(128):
            a(f"v_mov_b32_e64 v{80+i%16}, v{100+i%16}")
        a("s_sub_u32 s50, s50, 1")
        a("s_cmp_lg_u32 s50, 0")
        a("s_cbranch_scc1 L_xm")
    spinpt("g2")
    P = 120
    if ldsout:
        GA = 160
        GA = T+4
        for n in range(9):
            a(f"v_add_u32 v{T+2}, {64*n}, v{LANE}")
            a(f"v_mul_u32_u24 v{T+3}, 58255, v{T+2}")
            a(f"v_bfe_u32 v{T+3}, v{T+3}, 22, 1")
            a(f"v_xor_b32 v{T+3}, v{T+3}, v{T+2}")
            a(f"v_lshl_add_u32 v{GA+n}, v{T+3}, 4, s48")
    else:
        a("s_nop 7")
        a("s_nop 7")
    n = 0
    for qq in range(5):
        for half in range(2 if qq < 4 else 1):
            src = OACC + 16*qq + 8*half
            p = P + 4*n
            for r in range(4):
                a(f"v_cvt_pk_bf16_f32 v{p+r}, v{src+2*r}, v{src+2*r+1}")
            off = (qq*32 + half*128) if qq < 4 else 256
            if ldsout:
                a(f"ds_write_b128 v{OW}, v[{p}:{p+3}] offset:{off}")
            else:
                a(f"buffer_store_dwordx4 v[{p}:{p+3}], v{OA}, s[28:31], 0 offen offset:{off} {opol}")
            n += 1
    if ldsout:
        a("s_waitcnt lgkmcnt(0)")
        for n in range(9):
            a(f"ds_read_b128 v[{4*n}:{4*n+3}], v{OR_} offset:{n*1024}")
        for n in range(9):
            a(f"s_waitcnt lgkmcnt({8-n})")
            a(f"buffer_store_dwordx4 v[{4*n}:{4*n+3}], v{GA+n}, s[28:31], 0 offen {opol}")
    stamp()
    if stamps:
        a("s_waitcnt vmcnt(0)")
        stamp()
    if spin.startswith("end") or spin.startswith("gend"):
        a("s_waitcnt vmcnt(0)")
    spinpt("end")
    stamp_store()
    a("s_endpgm")

    a("L_loader:")
    stamp_n[0] = 1
    VD = T + 10
    a(f"v_lshlrev_b32 v{VD}, 4, v{LANE}")
    a("s_sub_u32 s40, s36, 4")
    a("s_mul_i32 s41, s40, 6912")
    for i in range(5):
        a(f"s_add_u32 s{45+i}, s38, {i}")
        a(f"s_cmp_ge_u32 s{45+i}, 5")
        a("s_cselect_b32 s42, 5, 0")
        a(f"s_sub_u32 s{45+i}, s{45+i}, s42")
        a(f"s_mul_i32 s{45+i}, s{45+i}, 82944")
    for j in range(3):
        a(f"s_add_u32 s{50+j}, s37, {j}")
        a(f"s_cmp_ge_u32 s{50+j}, 3")
        a("s_cselect_b32 s42, 3, 0")
        a(f"s_sub_u32 s{50+j}, s{50+j}, s42")
        a(f"s_mul_i32 s{50+j}, s{50+j}, 27648")
        a(f"s_add_u32 s{50+j}, s{50+j}, s41")
    def issue_stage(s):
        cgj, ti = divmod(s, 5)
        a(f"s_add_u32 s43, s{45+ti}, s{50+cgj}")
        a(f"s_add_u32 m0, s41, {RING + (s%4)*SLOT}")
        a("s_add_u32 s44, s43, 4096")
        for n in range(4):
            a(f"buffer_load_dwordx4 v{VD}, s[20:23], s43 offen offset:{n*1024} {wpol} lds")
        a(f"s_add_u32 m0, s41, {RING + (s%4)*SLOT + 4096}")
        a("s_nop 0")
        for n in range(2):
            a(f"buffer_load_dwordx4 v{VD}, s[20:23], s44 offen offset:{n*1024} {wpol} lds")
        a("s_mov_b32 exec_hi, 0xffff")
        a(f"buffer_load_dwordx4 v{VD}, s[20:23], s44 offen offset:2048 {wpol} lds")
        a("s_mov_b32 exec_hi, -1")
    def issue_wo():
        a("s_mul_i32 s43, s40, 10368")
        for b in range(3):
            a(f"s_add_u32 m0, s43, {WO_LDS}")
            a("s_nop 0")
            for n in range(4):
                p = b*4 + n
                if p < 10:
                    a(f"buffer_load_dwordx4 v{VD}, s[24:27], s43 offen offset:{n*1024} lds")
                elif p == 10:
                    a("s_mov_b64 exec, 0xff")
                    a(f"buffer_load_dwordx4 v{VD}, s[24:27], s43 offen offset:{n*1024} lds")
                    a("s_mov_b64 exec, -1")
            a("s_add_u32 s43, s43, 4096")
    issue_stage(0)
    issue_stage(1)
    stamp()
    a("s_waitcnt vmcnt(7)")
    stamp()
    a("s_barrier")
    issue_stage(2)
    issue_stage(3)
    for s in range(1, 15):
        if s <= 12: a("s_waitcnt vmcnt(14)")
        elif s == 13: a("s_waitcnt vmcnt(18)")
        else: a("s_waitcnt vmcnt(11)")
        stamp()
        a("s_barrier")
        stamp()
        if s + 3 <= 14: issue_stage(s+3)
        elif s == 12: issue_wo()
    a("s_waitcnt vmcnt(0)")
    a("s_barrier")
    stamp_store(8)
    a("L_end:")
    a("s_endpgm")
    a("L_code_end:")
    return wrap(a.text(), 250, 512, LDS_TOTAL, 232)

if __name__ == "__main__":
    out = sys.argv[1]
    kw = {}
    for arg in sys.argv[2:]:
        k, _, v = arg.partition("=")
        if v == "": kw[k] = True
        elif v in ("0", "1"): kw[k] = bool(int(v))
        else: kw[k] = v.replace("+", " ") if v != "none" else ""
    open(out, "w").write(gen(**kw))
```

```python
import sys
from common import *

XREG = 0
RING = 39168
SLOT = 18432
NSLOT = 6
WO_LDS = RING + 4 * SLOT
FLAGS = WO_LDS + 41472
F_LAND = FLAGS
F_CONS = FLAGS + 1024
F_X = FLAGS + 2048
ZERO = FLAGS + 3072
LDS_TOTAL = FLAGS + 3072 + 256
NSTEP = 23
def slot_of(s): return (s + 5) % NSLOT

def gen(stamps=False, rot=True, xpol="nt", wpol="", opol="sc1", pf=True, spin="", L=2, slp=1):
    a = Asm()
    ACC = 0
    AF = 144
    BF = 180
    WA = 196
    XA, XB, XC, XR = 200, 201, 202, 203
    WOA, WOA8, OW, OW8, OR_ = 204, 205, 206, 207, 208
    GA = 209
    FA, FW, FV, FC = 214, 215, 216, 217
    LANE = 218
    STV = 220
    T = 222
    OF = 228
    stamp_n = [0]
    def stamp():
        if not stamps: return
        i = stamp_n[0]; stamp_n[0] += 1
        a(f"s_memtime s[60:61]")
        a(f"s_memrealtime s[62:63]")
        a("s_waitcnt lgkmcnt(0)")
        a(f"v_writelane_b32 v{STV}, s60, {i}")
        a(f"v_writelane_b32 v{STV+1}, s62, {i}")
    def stamp_store():
        if not stamps: return
        a("s_lshl_b32 s60, s2, 3")
        a("s_add_u32 s60, s60, s36")
        a("s_lshl_b32 s60, s60, 9")
        a(f"v_lshlrev_b32 v{T}, 2, v{LANE}")
        a(f"v_add_u32 v{T}, s60, v{T}")
        a(f"buffer_store_dword v{STV}, v{T}, s[32:35], 0 offen")
        a(f"buffer_store_dword v{STV+1}, v{T}, s[32:35], 0 offen offset:256")
    def stamp0():
        if stamps:
            a(f"v_writelane_b32 v{STV}, s60, 0")
            a(f"v_writelane_b32 v{STV+1}, s62, 0")
            stamp_n[0] = 1
            a("s_mov_b32 s32, s14\ns_mov_b32 s33, s15\ns_mov_b32 s34, 0x1000000\ns_mov_b32 s35, 0x20000")
    def spinpt(name):
        if not spin: return
        pt, _, t = spin.partition("@")
        if pt != name: return
        a("L_spin:")
        a("s_memrealtime s[66:67]")
        a("s_waitcnt lgkmcnt(0)")
        a("s_sub_u32 s66, s66, s64")
        a(f"s_cmp_lt_u32 s66, {int(float(t)*100)}")
        a("s_cbranch_scc1 L_spin")

    a("s_cmp_ge_u32 s2, 250")
    a("s_cbranch_scc1 L_end")
    a("s_load_dwordx8 s[4:11], s[0:1], 0")
    if spin:
        a("s_memrealtime s[64:65]")
    if stamps:
        a("s_load_dwordx2 s[14:15], s[0:1], 40")
        a(f"s_memtime s[60:61]")
        a(f"s_memrealtime s[62:63]")
        a(f"v_mov_b32 v{STV}, 0\nv_mov_b32 v{STV+1}, 0")
    a(f"v_lshrrev_b32 v{T}, 6, v0")
    a(f"v_and_b32 v{LANE}, 63, v0")
    a(f"v_readfirstlane_b32 s36, v{T}")
    a(f"v_lshlrev_b32 v{T+1}, 3, v0")
    a(f"v_mov_b32 v{T+2}, 0\nv_mov_b32 v{T+3}, 0")
    a(f"v_min_u32 v{T+1}, {3328-8}, v{T+1}")
    a(f"v_add_u32 v{T+1}, {FLAGS}, v{T+1}")
    a(f"ds_write_b64 v{T+1}, v[{T+2}:{T+3}]")
    if rot:
        a("s_lshr_b32 s37, s2, 3")
        a("s_mul_i32 s37, s37, 3")
        a("s_mul_i32 s38, s37, 2850")
        a("s_lshr_b32 s38, s38, 16")
        a("s_mul_i32 s38, s38, 23")
        a("s_sub_u32 s37, s37, s38")
    else:
        a("s_mov_b32 s37, 0")
    a("s_and_b32 s39, s36, 3")
    a("s_cmp_ge_u32 s36, 4")
    a("s_cbranch_scc1 L_loader")

    def flag_addrs():
        a(f"v_and_b32 v{FA}, 3, v{LANE}")
        a(f"v_lshlrev_b32 v{FA}, 8, v{FA}")
        a(f"v_add_u32 v{FA}, {FLAGS}, v{FA}")
        a("s_lshl_b32 s40, s39, 8")
        a(f"s_add_u32 s40, s40, {FLAGS}")
        a(f"v_lshl_add_u32 v{FW}, v{LANE}, 2, s40")

    a("s_lshl_b32 s41, s2, 7")
    a("s_sub_u32 s41, s41, 8")
    a("s_mul_i32 s41, s41, 288")
    a("s_cmp_eq_u32 s2, 0")
    a("s_cselect_b32 s42, 144, 0")
    a("s_cmp_eq_u32 s2, 125")
    a("s_cselect_b32 s42, 144, s42")
    XV, XV0 = T+4, T+5
    a(f"v_lshl_add_u32 v{XV}, v0, 4, s41")
    a(f"v_cmp_gt_u32 vcc, s42, v0")
    a(f"v_mov_b32 v{T+6}, 0x7fff0000")
    a(f"v_add_u32 v{T+7}, 4096, v{XV}")
    a(f"v_cndmask_b32 v{XV0}, v{XV}, v{T+6}, vcc")
    a(f"v_cmp_gt_u32 vcc, {2448-2304}, v0")
    a("s_lshl_b32 s43, s36, 10")
    a("s_mov_b32 s18, 9216000\ns_mov_b32 s19, 0x20000")
    a("s_mov_b32 m0, s43")
    a("s_mov_b64 s[56:57], vcc")
    a("s_waitcnt lgkmcnt(0)")
    a("s_mov_b32 s16, s4\ns_mov_b32 s17, s5")
    a(f"buffer_load_dwordx4 v{XV0}, s[16:19], 0 offen {xpol} lds")
    for i in range(1, 10):
        a(f"s_add_u32 m0, s43, {XREG + i*4096}")
        a(f"s_mov_b32 s44, {(i-1)*4096}")
        if i == 9:
            a("s_mov_b64 exec, s[56:57]")
            a("s_cbranch_execz L_skipx")
        a(f"buffer_load_dwordx4 v{T+7}, s[16:19], s44 offen {xpol} lds")
    a("L_skipx:")
    a("s_mov_b64 exec, -1")
    a("s_barrier")
    stamp0()
    a("s_mov_b32 s28, s10\ns_mov_b32 s29, s11\ns_mov_b32 s30, 9216000\ns_mov_b32 s31, 0x20000")
    stamp()
    flag_addrs()
    Q, TT, I2, I3 = T+8, T+9, T+10, T+11
    U0, U1, U2, U3 = T+12, T+13, T+14, T+15
    a(f"v_lshrrev_b32 v{Q}, 4, v{LANE}")
    a(f"v_and_b32 v{TT}, 15, v{LANE}")
    a(f"v_bfe_u32 v{I2}, v{LANE}, 2, 2")
    a(f"v_and_b32 v{I3}, 3, v{LANE}")
    a("s_movk_i32 s44, 288")
    a("s_movk_i32 s45, 576")
    a("s_lshl_b32 s40, s37, 6")
    a(f"v_lshl_add_u32 v{XC}, v{Q}, 4, s40")
    a("s_lshl_b32 s40, s36, 4")
    a("s_add_u32 s40, s40, 8")
    a(f"v_add_u32 v{U0}, s40, v{TT}")
    a(f"v_mul_u32_u24 v{XR}, s44, v{U0}")
    a(f"v_lshl_add_u32 v{U0}, v{Q}, 3, v{I2}")
    a(f"v_mul_u32_u24 v{U0}, s45, v{U0}")
    a(f"v_lshl_add_u32 v{U0}, v{I3}, 3, v{U0}")
    a(f"v_and_b32 v{U1}, 1, v{Q}")
    a(f"v_lshlrev_b32 v{U1}, 5, v{U1}")
    a(f"v_add_u32 v{U0}, {RING}, v{U0}")
    a(f"v_add_u32 v{WA}, v{U0}, v{U1}")
    a(f"v_sub_u32 v{WA+1}, v{U0}, v{U1}")
    a(f"v_add_u32 v{WA+2}, {3*SLOT}, v{WA}")
    a(f"v_add_u32 v{WA+3}, {3*SLOT}, v{WA+1}")
    a(f"v_lshl_add_u32 v{U0}, v{Q}, 2, v{I2}")
    a(f"v_mul_u32_u24 v{U0}, s44, v{U0}")
    a(f"v_add_u32 v{U0}, {WO_LDS}, v{U0}")
    a(f"v_lshl_add_u32 v{WOA}, v{I3}, 4, v{U0}")
    a(f"v_lshl_add_u32 v{WOA8}, v{I3}, 3, v{U0}")
    a("s_mul_i32 s41, s36, 9216")
    a(f"s_add_u32 s41, s41, {RING}")
    a(f"v_bfe_u32 v{U1}, v{TT}, 2, 1")
    a(f"v_xor_b32 v{U2}, v{U1}, v{Q}")
    a(f"v_lshl_add_u32 v{U2}, v{U2}, 4, s41")
    a(f"v_mad_u32_u24 v{OW}, v{TT}, s44, v{U2}")
    a(f"v_lshrrev_b32 v{U2}, 1, v{Q}")
    a(f"v_xor_b32 v{U2}, v{U2}, v{U1}")
    a(f"v_lshl_add_u32 v{U2}, v{U2}, 4, s41")
    a(f"v_and_b32 v{U3}, 1, v{Q}")
    a(f"v_lshl_add_u32 v{U2}, v{U3}, 3, v{U2}")
    a(f"v_mad_u32_u24 v{OW8}, v{TT}, s44, v{U2}")
    a(f"v_lshl_add_u32 v{OR_}, v{LANE}, 4, s41")
    a("s_lshl_b32 s40, s2, 7")
    a("s_lshl_b32 s41, s36, 4")
    a("s_add_u32 s40, s40, s41")
    a("s_mul_i32 s48, s40, 288")
    for n in range(5):
        a(f"v_add_u32 v{U0}, {64*n}, v{LANE}")
        a(f"v_mul_u32_u24 v{U1}, 58255, v{U0}")
        a(f"v_bfe_u32 v{U1}, v{U1}, 22, 1")
        a(f"v_xor_b32 v{U1}, v{U1}, v{U0}")
        a(f"v_lshl_add_u32 v{GA+n}, v{U1}, 4, s48")
    a("s_movk_i32 s49, 18432")
    a("s_movk_i32 s46, 864")
    a(f"v_mov_b32 v{T+1}, {ZERO}")
    a("s_movk_i32 s50, 29128")

    def baddr_list():
        return [
            f"v_mul_u32_u24 v{T}, s50, v{XC}",
            f"v_add_u32 v{XA}, v{XR}, v{XC}",
            f"v_lshrrev_b32 v{T}, 23, v{T}",
            f"v_cmp_gt_u32 s[52:53], s51, v{XC}",
            f"v_mul_u32_u24 v{T}, s46, v{T}",
            f"v_add_u32 v{XC}, 64, v{XC}",
            f"v_sub_u32 v{XA}, v{XA}, v{T}",
            f"v_subrev_u32 v{T}, 1472, v{XC}",
            f"v_add_u32 v{XB}, s49, v{XA}",
            f"v_min_u32 v{XC}, v{XC}, v{T}",
            f"v_cndmask_b32 v{XA}, v{T+1}, v{XA}, s[52:53]",
            f"v_cndmask_b32 v{XB}, v{T+1}, v{XB}, s[52:53]",
        ]
    a("s_movk_i32 s51, 1440")

    q = []
    def rd(instr, tag):
        a(instr); q.append(tag)
    def need(tags):
        idx = -1
        for i, t in enumerate(q):
            if t in tags: idx = i
        if idx < 0: return
        n = len(q) - 1 - idx
        keep = n if n < 12 else 9
        a(f"s_waitcnt lgkmcnt({keep})")
        del q[:len(q)-keep]
    def readA(s, j, half=None):
        sl = slot_of(s)
        base = WA + (j & 1) + (2 if sl >= 3 else 0)
        off = (sl % 3) * SLOT + j * 32
        r = AF + 4*(j % 9)
        if half in (None, 0):
            rd(f"ds_read_b64_tr_b16 v[{r}:{r+1}], v{base} offset:{off}", ("A", s, j))
        if half in (None, 1):
            rd(f"ds_read_b64_tr_b16 v[{r+2}:{r+3}], v{base} offset:{off+2304}", ("A", s, j))
    def readB(s, n=None):
        r = BF + 8*(s % 2)
        if n in (None, 0): rd(f"ds_read_b128 v[{r}:{r+3}], v{XA}", ("B", s, 0))
        if n in (None, 1): rd(f"ds_read_b128 v[{r+4}:{r+7}], v{XB}", ("B", s, 1))
    slow = []
    def check_flag(name, off, thr):
        need({("F", name)})
        a(f"v_cmp_gt_u32 vcc, {thr}, v{FV}")
        a(f"s_cbranch_vccnz L_slow_{name}")
        a(f"L_back_{name}:")
        slow.append((name, off, thr))
    def read_flag(name, off):
        rd(f"ds_read_b32 v{FV}, v{FA} offset:{off - FLAGS}", ("F", name))
    def publish(off, val):
        a(f"v_mov_b32 v{FC}, {val}")
        rd(f"ds_write_b32 v{FW}, v{FC} offset:{off - FLAGS}", ("W",))

    for ln in baddr_list(): a(ln)
    a("s_waitcnt vmcnt(0)")
    publish(F_X, 1)
    read_flag("l0", F_LAND); check_flag("l0", F_LAND, 1)
    for j in range(7): readA(0, j)
    read_flag("x", F_X); check_flag("x", F_X, 1)
    spinpt("b0")
    stamp()
    readB(0)
    readA(0, 7)
    for s in range(NSTEP):
        nxt = s + 1
        extra = baddr_list() if nxt < NSTEP else []
        for j in range(18):
            need({("A", s, j), ("B", s, 0), ("B", s, 1)})
            for n in range(2):
                acc = ACC + (j*2+n)*4
                cop = "0" if s == 0 else f"v[{acc}:{acc+3}]"
                br = BF + 8*(s % 2) + 4*n
                ar = AF + 4*(j % 9)
                a(f"v_mfma_f32_16x16x32_bf16 v[{acc}:{acc+3}], v[{ar}:{ar+3}], v[{br}:{br+3}], {cop}")
                if n == 1 and j == 9:
                    pass
                jj = j + 8
                if jj < 18: readA(s, jj, n)
                elif nxt < NSTEP: readA(nxt, jj - 18, n)
                if n == 0:
                    if j == 9 and nxt < NSTEP: check_flag(f"l{nxt}", F_LAND, nxt+1)
                    elif j == 17: publish(F_CONS, s+1)
                    elif j in (14, 15) and nxt < NSTEP: readB(nxt, j - 14)
                    elif extra: a(extra.pop(0))
                    if nxt == NSTEP:
                        if j == 3: read_flag("wo", F_LAND)
                        if j == 8: check_flag("wo", F_LAND, NSTEP+1)
                        if j == 10: read_flag("st", F_CONS)
                        if j == 15: check_flag("st", F_CONS, 21)
                else:
                    if j == 3 and nxt < NSTEP: read_flag(f"l{nxt}", F_LAND)
        assert not extra
    stamp()
    spinpt("ml")
    a("s_mov_b32 s40, 0x4038aa3b\ns_mov_b32 s41, 0x4038aa3b")
    a("s_mov_b32 s42, 0xbfb8aa3b\ns_mov_b32 s43, 0xbfb8aa3b")
    a("s_mov_b32 s44, 0x42800000")
    items = [(n, d) for n in range(2) for d in range(5)]
    NI = len(items)
    def regs(i):
        n, d = items[i]
        js = [2*d, 2*d+1] if d < 4 else [8]
        f = []; g = []
        for j in js:
            f += [ACC + (j*2+n)*4 + r for r in range(4)]
            g += [ACC + ((j+9)*2+n)*4 + r for r in range(4)]
        return f, g
    def zreg(i): return BF + 4*(i % 4)
    def oacc(n, o): return (AF + 4*o) if n == 0 else (ACC + 8*o)
    def pr(r): return f"v[{r}:{r+1}]"
    def S1(i):
        f, g = regs(i); o = []
        for k in range(0, len(f), 2):
            o.append(f"v_pk_mul_f32 {pr(f[k])}, {pr(f[k])}, s[40:41]")
            o.append(f"v_pk_mul_f32 {pr(g[k])}, {pr(g[k])}, s[42:43]")
        return o
    def S2(i):
        f, g = regs(i); o = []
        for k in range(len(f)): o.append(f"v_min_f32 v{f[k]}, s44, v{f[k]}")
        for k in range(len(f)): o.append(f"v_exp_f32 v{g[k]}, v{g[k]}")
        for k in range(len(f)): o.append(f"v_exp_f32 v{f[k]}, v{f[k]}")
        return o
    def S3(i):
        f, g = regs(i); o = []
        for k in range(0, len(f), 2): o.append(f"v_pk_add_f32 {pr(g[k])}, {pr(g[k])}, 1.0 op_sel_hi:[1,0]")
        for k in range(0, len(f), 2): o.append(f"v_pk_fma_f32 {pr(g[k])}, {pr(f[k])}, {pr(g[k])}, {pr(g[k])}")
        return o
    def S4(i):
        f, g = regs(i)
        return [f"v_rcp_f32 v{r}, v{r}" for r in g]
    def S5(i):
        f, g = regs(i)
        return [f"v_pk_fma_f32 {pr(f[k])}, {pr(f[k])}, {pr(g[k])}, {pr(g[k])} neg_lo:[0,0,1] neg_hi:[0,0,1]" for k in range(0, len(f), 2)]
    def S6(i):
        f, g = regs(i)
        return [f"v_cvt_pk_bf16_f32 v{zreg(i)+k//2}, v{f[k]}, v{f[k+1]}" for k in range(0, len(f), 2)]
    mlist = [(i, o) for i in range(NI) for o in range(9)]
    def readO(k):
        i, o = mlist[k]; n, d = items[i]
        r = OF + 4*(k % 7)
        base = WOA if o < 8 else WOA8
        off = d*32*288 + ((o//2)*64 + (o & 1)*8 if o < 8 else 256)
        rd(f"ds_read_b64_tr_b16 v[{r}:{r+1}], v{base} offset:{off}", ("O", k))
        if d < 4:
            rd(f"ds_read_b64_tr_b16 v[{r+2}:{r+3}], v{base} offset:{off+16*288}", ("O", k))
    def mfma2(k):
        i, o = mlist[k]; n, d = items[i]
        need({("O", k)})
        r = OF + 4*(k % 7); acc = oacc(n, o); z = zreg(i)
        cop = "0" if d == 0 else f"v[{acc}:{acc+3}]"
        if d < 4:
            a(f"v_mfma_f32_16x16x32_bf16 v[{acc}:{acc+3}], v[{r}:{r+3}], v[{z}:{z+3}], {cop}")
        else:
            a(f"v_mfma_f32_16x16x16_bf16 v[{acc}:{acc+3}], v[{r}:{r+1}], v[{z}:{z+1}], {cop}")
        if k + 7 < len(mlist): readO(k+7)
    def pbuf(n, idx):
        return ACC + 8*(9+idx)
    def out_cvt(n):
        ops = []
        for pp in range(4):
            p = pbuf(n, pp)
            a0, a1 = oacc(n, 2*pp), oacc(n, 2*pp+1)
            ops += [("v", f"v_cvt_pk_bf16_f32 v{p}, v{a0}, v{a0+1}"), ("v", f"v_cvt_pk_bf16_f32 v{p+1}, v{a0+2}, v{a0+3}"),
                    ("v", f"v_cvt_pk_bf16_f32 v{p+2}, v{a1}, v{a1+1}"), ("v", f"v_cvt_pk_bf16_f32 v{p+3}, v{a1+2}, v{a1+3}"),
                    ("l", f"ds_write_b128 v{OW}, v[{p}:{p+3}] offset:{n*4608 + pp*64}", ("OW", n))]
        p = pbuf(n, 4); a0 = oacc(n, 8)
        ops += [("v", f"v_cvt_pk_bf16_f32 v{p}, v{a0}, v{a0+1}"), ("v", f"v_cvt_pk_bf16_f32 v{p+1}, v{a0+2}, v{a0+3}"),
                ("l", f"ds_write_b64 v{OW8}, v[{p}:{p+1}] offset:{n*4608 + 256}", ("OW", n))]
        return ops
    def rbuf(n, idx):
        return oacc(n, idx)
    def out_read(n):
        return [("l", f"ds_read_b128 v[{rbuf(n,k)}:{rbuf(n,k)+3}], v{OR_} offset:{n*4608 + k*1024}", ("OR", n, k)) for k in range(5)]
    def out_store(n):
        ops = []
        for k in range(5):
            ops.append(("st", n, k))
        return ops
    def emit(op):
        if op[0] == "v": a(op[1])
        elif op[0] == "l": rd(op[1], op[2])
        elif op[0] == "st":
            _, n, k = op
            need({("OR", n, k)})
            so = "0" if n == 0 else "s49"
            if k == 4: a("s_mov_b32 exec_hi, 0")
            a(f"buffer_store_dwordx4 v[{rbuf(n,k)}:{rbuf(n,k)+3}], v{GA+k}, s[28:31], {so} offen {opol}")
            if k == 4: a("s_mov_b32 exec_hi, -1")
    for k in range(7): readO(k)
    for r in range(NI + 2):
        pk = []
        if r < NI: pk += S1(r)
        else: pk += ["s_nop 0"]
        if 0 <= r-1 < NI: pk += S3(r-1)
        if 0 <= r-2 < NI: pk += S5(r-2)
        for ln in pk: a(ln)
        tr = []
        if 0 <= r-2 < NI: tr += [("v", x) for x in S6(r-2)]
        start = len(tr) + 2
        if 0 <= r-1 < NI: tr += [("v", x) for x in S4(r-1)]
        if r == 7: tr += out_cvt(0)
        if r == 8: tr += out_read(0)
        if r < NI: tr += [("v", x) for x in S2(r)]
        if r == 8: tr += out_store(0)
        while len(tr) < start: tr.append(("v", "s_nop 0"))
        ms = [k for k, (i, o) in enumerate(mlist) if i == r-2]
        pos = {}
        span = max(len(tr) - start - 2, 0)
        for m, k in enumerate(ms):
            pos.setdefault(start + (m*span)//9, []).append(k)
        for idx in range(len(tr) + 1):
            for k in pos.get(idx, []): mfma2(k)
            if idx < len(tr): emit(tr[idx])
    stamp()
    a("s_nop 7")
    for op in out_cvt(1): emit(op)
    for op in out_read(1): emit(op)
    for op in out_store(1): emit(op)
    stamp()
    if stamps or spin.startswith("end"):
        a("s_waitcnt vmcnt(0)")
    stamp()
    spinpt("end")
    stamp_store()
    a("s_endpgm")
    for name, off, thr in slow:
        a(f"L_slow_{name}:")
        a(f"ds_read_b32 v{FV}, v{FA} offset:{off - FLAGS}")
        a("s_waitcnt lgkmcnt(0)")
        a(f"v_cmp_gt_u32 vcc, {thr}, v{FV}")
        a(f"s_cbranch_vccnz L_slow_{name}")
        a(f"s_branch L_back_{name}")

    a("L_loader:")
    VD, VD0 = T + 4, T + 5
    a("s_and_b32 s40, s39, 1")
    a("s_lshl_b32 s40, s40, 1")
    a(f"v_xor_b32 v{VD}, s40, v{LANE}")
    a(f"v_lshlrev_b32 v{VD}, 4, v{VD}")
    a(f"v_lshlrev_b32 v{VD0}, 4, v{LANE}")
    a("s_mul_i32 s41, s39, 4608")
    a(f"s_mul_i32 s43, s37, {SLOT}")
    a("s_add_u32 s43, s43, s41")
    a(f"s_add_u32 s45, s41, {NSTEP*SLOT}")
    a("s_mov_b32 s22, 414720\ns_mov_b32 s23, 0x20000")
    a("s_mov_b32 s26, 41472\ns_mov_b32 s27, 0x20000")
    a("s_waitcnt lgkmcnt(0)")
    a("s_mov_b32 s20, s6\ns_mov_b32 s21, s7")
    a("s_mov_b32 s24, s8\ns_mov_b32 s25, s9")
    def issue_step(s):
        a(f"s_add_u32 m0, s41, {RING + slot_of(s)*SLOT}")
        a(f"v_add_u32 v{T+6}, s43, v{VD}")
        for n in range(4):
            a(f"buffer_load_dwordx4 v{T+6}, s[20:23], 0 offen offset:{n*1024} {wpol} lds")
        a(f"s_add_u32 m0, s41, {RING + slot_of(s)*SLOT + 4096}")
        a(f"v_add_u32 v{T+6}, 4096, v{T+6}")
        a("s_mov_b32 exec_hi, 0")
        a(f"buffer_load_dwordx4 v{T+6}, s[20:23], 0 offen {wpol} lds")
        a("s_mov_b32 exec_hi, -1")
        a(f"s_add_u32 s43, s43, {SLOT}")
        a("s_cmp_eq_u32 s43, s45")
        a("s_cselect_b32 s43, s41, s43")
    def issue_wo():
        a("s_mul_i32 s43, s39, 10368")
        for b in range(3):
            a(f"s_add_u32 m0, s43, {WO_LDS}")
            a("s_nop 0")
            for n in range(4):
                p = b*4 + n
                if p < 10:
                    a(f"buffer_load_dwordx4 v{VD0}, s[24:27], s43 offen offset:{n*1024} lds")
                elif p == 10:
                    a("s_mov_b64 exec, 0xff")
                    a(f"buffer_load_dwordx4 v{VD0}, s[24:27], s43 offen offset:{n*1024} lds")
                    a("s_mov_b64 exec, -1")
            a("s_add_u32 s43, s43, 4096")
    def lpublish(val):
        a(f"v_mov_b32 v{FC}, {val}")
        a(f"ds_write_b32 v{FW}, v{FC} offset:{F_LAND - FLAGS}")
    def lpoll(name, thr):
        a(f"L_poll_{name}:")
        a(f"ds_read_b32 v{FV}, v{FA} offset:{F_CONS - FLAGS}")
        a("s_waitcnt lgkmcnt(0)")
        a(f"v_cmp_gt_u32 vcc, {thr}, v{FV}")
        a(f"s_cbranch_vccz L_go_{name}")
        a(f"s_sleep {slp}")
        a(f"s_branch L_poll_{name}")
        a(f"L_go_{name}:")
    issue_step(0)
    a("s_barrier")
    stamp0()
    flag_addrs()
    npf = 0
    if pf:
        a("s_getpc_b64 s[50:51]")
        a("L_pc:")
        a("s_sub_u32 s50, s50, L_pc-" + KNAME)
        a("s_subb_u32 s51, s51, 0")
        a(f"v_subrev_u32 v1, 256, v0")
        a(f"v_lshlrev_b32 v1, 7, v1")
        a(f"v_min_u32 v1, L_code_end-{KNAME}-4, v1")
        a("global_load_dword v2, v1, s[50:51]")
        npf = 1
    stamp()
    for s in range(1, NSTEP):
        if s >= NSLOT: lpoll(f"s{s}", s - NSLOT + 1)
        issue_step(s)
        if s >= L:
            a(f"s_waitcnt vmcnt({5*L + (npf if s-L == 0 else 0)})")
            lpublish(s - L + 1)
            stamp()
    for k in range(L-1, -1, -1):
        pass
    for k in range(L-1, -1, -1):
        a(f"s_waitcnt vmcnt({5*k})")
        lpublish(NSTEP - k)
    lpoll("wo", 19)
    issue_wo()
    a("s_waitcnt vmcnt(0)")
    lpublish(NSTEP + 1)
    stamp()
    a("s_waitcnt lgkmcnt(0)")
    stamp_store()
    a("L_end:")
    a("s_endpgm")
    a("L_code_end:")
    return wrap(a.text(), 250, 512, LDS_TOTAL, 256)

if __name__ == "__main__":
    out = sys.argv[1]
    kw = {}
    for arg in sys.argv[2:]:
        k, _, v = arg.partition("=")
        if v == "": kw[k] = True
        elif k in ("L", "slp"): kw[k] = int(v)
        elif v in ("0", "1"): kw[k] = bool(int(v))
        else: kw[k] = v.replace("+", " ") if v != "none" else ""
    open(out, "w").write(gen(**kw))
```

```python
import sys
from common import *

XREG = 0
RING = 39168
SLOT = 18432
NSLOT = 6
WO_LDS = RING + 4 * SLOT
LDS_TOTAL = WO_LDS + 41472
NFULL = 22
NSTEP = 23
def slot_of(s): return (s + 5) % NSLOT

def gen(stamps=False, rot=True, xpol="nt", wpol="", opol="sc1", pf=True, spin="", bint=2, pre=3, dbgm="", lst=False, w0pol=None, nfirst=6, b0bud=1, wfirst=True, wpf=-1, slp0=8, spf=0):
    a = Asm()
    ACC = 0
    AF = 144
    BF = 180
    WA = 196
    WH = 200
    XH = 202
    WOA, WOA8, OW, OW8, OR_ = 204, 205, 206, 207, 208
    GA = 209
    LANE = 218
    STV = 220
    T = 222
    OF = 228
    XA = 228
    stamp_n = [0]
    def stamp(force=True):
        if not stamps or not force: return
        i = stamp_n[0]; stamp_n[0] += 1
        a(f"s_memtime s[60:61]")
        a(f"s_memrealtime s[62:63]")
        a("s_waitcnt lgkmcnt(0)")
        a(f"v_writelane_b32 v{STV}, s60, {i}")
        a(f"v_writelane_b32 v{STV+1}, s62, {i}")
    def stamp_store():
        if not stamps: return
        a("s_lshl_b32 s60, s2, 3")
        a("s_add_u32 s60, s60, s36")
        a("s_lshl_b32 s60, s60, 9")
        a(f"v_lshlrev_b32 v{T}, 2, v{LANE}")
        a(f"v_add_u32 v{T}, s60, v{T}")
        a(f"buffer_store_dword v{STV}, v{T}, s[32:35], 0 offen")
        a(f"buffer_store_dword v{STV+1}, v{T}, s[32:35], 0 offen offset:256")
    def stamp0():
        if stamps:
            a(f"v_writelane_b32 v{STV}, s60, 0")
            a(f"v_writelane_b32 v{STV+1}, s62, 0")
            stamp_n[0] = 1
            a("s_mov_b32 s32, s14\ns_mov_b32 s33, s15\ns_mov_b32 s34, 0x1000000\ns_mov_b32 s35, 0x20000")
    def spinpt(name):
        if not spin: return
        pt, _, t = spin.partition("@")
        if pt != name: return
        a("L_spin:")
        a("s_memrealtime s[66:67]")
        a("s_waitcnt lgkmcnt(0)")
        a("s_sub_u32 s66, s66, s64")
        a(f"s_cmp_lt_u32 s66, {int(float(t)*100)}")
        a("s_cbranch_scc1 L_spin")

    BARS = [0]
    b = 1
    while b < NSTEP:
        BARS.append(b)
        b += 1 if b < 3 else bint
    a("s_cmp_ge_u32 s2, 250")
    a("s_cbranch_scc1 L_end")
    a("s_load_dwordx8 s[4:11], s[0:1], 0")
    if spin:
        a("s_memrealtime s[64:65]")
    if stamps:
        a("s_load_dwordx2 s[14:15], s[0:1], 40")
        a(f"s_memtime s[60:61]")
        a(f"s_memrealtime s[62:63]")
        a(f"v_mov_b32 v{STV}, 0\nv_mov_b32 v{STV+1}, 0")
    a(f"v_lshrrev_b32 v{T}, 6, v0")
    a(f"v_and_b32 v{LANE}, 63, v0")
    a(f"v_readfirstlane_b32 s36, v{T}")
    if rot:
        a("s_lshr_b32 s37, s2, 3")
        a("s_mul_i32 s37, s37, 3")
        a("s_mul_i32 s38, s37, 2979")
        a("s_lshr_b32 s38, s38, 16")
        a("s_mul_i32 s38, s38, 22")
        a("s_sub_u32 s37, s37, s38")
    else:
        a("s_mov_b32 s37, 0")
    a("s_and_b32 s39, s36, 3")
    a("s_cmp_ge_u32 s36, 4")
    a("s_cbranch_scc1 L_loader")

    a("s_lshl_b32 s41, s2, 7")
    a("s_sub_u32 s41, s41, 8")
    a("s_mul_i32 s41, s41, 288")
    a("s_cmp_eq_u32 s2, 0")
    a("s_cselect_b32 s42, 144, 0")
    a("s_cmp_eq_u32 s2, 125")
    a("s_cselect_b32 s42, 144, s42")
    XV, XV0 = T+2, T+3
    a(f"v_lshl_add_u32 v{XV}, v0, 4, s41")
    a(f"v_cmp_gt_u32 vcc, s42, v0")
    a(f"v_mov_b32 v{T+4}, 0x7fff0000")
    a(f"v_add_u32 v{T+5}, 4096, v{XV}")
    a(f"v_cndmask_b32 v{XV0}, v{XV}, v{T+4}, vcc")
    a(f"v_cmp_gt_u32 vcc, {2448-2304}, v0")
    a("s_lshl_b32 s43, s36, 10")
    a("s_mov_b32 s18, 9216000\ns_mov_b32 s19, 0x20000")
    a("s_mov_b32 m0, s43")
    a("s_mov_b64 s[56:57], vcc")
    a("s_waitcnt lgkmcnt(0)")
    a("s_mov_b32 s16, s4\ns_mov_b32 s17, s5")
    if wfirst: a("s_barrier")
    a(f"buffer_load_dwordx4 v{XV0}, s[16:19], 0 offen {xpol} lds")
    for i in range(1, 10):
        a(f"s_add_u32 m0, s43, {XREG + i*4096}")
        a(f"s_mov_b32 s44, {(i-1)*4096}")
        if i == 9:
            a("s_mov_b64 exec, s[56:57]")
            a("s_cbranch_execz L_skipx")
        a(f"buffer_load_dwordx4 v{T+5}, s[16:19], s44 offen {xpol} lds")
    a("L_skipx:")
    a("s_mov_b64 exec, -1")
    stamp0()
    a("s_mov_b32 s28, s10\ns_mov_b32 s29, s11\ns_mov_b32 s30, 9216000\ns_mov_b32 s31, 0x20000")
    stamp()
    Q, TT, I2, I3 = 1, 2, 3, 4
    U0, U1, U2, U3, XC, XR = 5, 6, 7, 8, 9, 10
    a(f"v_lshrrev_b32 v{Q}, 4, v{LANE}")
    a(f"v_and_b32 v{TT}, 15, v{LANE}")
    a(f"v_bfe_u32 v{I2}, v{LANE}, 2, 2")
    a(f"v_and_b32 v{I3}, 3, v{LANE}")
    a("s_movk_i32 s44, 288")
    a("s_movk_i32 s45, 576")
    a("s_lshl_b32 s40, s37, 6")
    a(f"v_lshl_add_u32 v{XC}, v{Q}, 4, s40")
    a("s_lshl_b32 s40, s36, 4")
    a("s_add_u32 s40, s40, 8")
    a(f"v_add_u32 v{U0}, s40, v{TT}")
    a(f"v_mul_u32_u24 v{XR}, s44, v{U0}")
    a(f"v_lshl_add_u32 v{U0}, v{Q}, 3, v{I2}")
    a(f"v_mul_u32_u24 v{U0}, s45, v{U0}")
    a(f"v_lshl_add_u32 v{U0}, v{I3}, 3, v{U0}")
    a(f"v_and_b32 v{U1}, 1, v{Q}")
    a(f"v_lshlrev_b32 v{U1}, 5, v{U1}")
    a(f"v_add_u32 v{U0}, {RING}, v{U0}")
    a(f"v_add_u32 v{WA}, v{U0}, v{U1}")
    a(f"v_sub_u32 v{WA+1}, v{U0}, v{U1}")
    a(f"v_add_u32 v{WA+2}, {3*SLOT}, v{WA}")
    a(f"v_add_u32 v{WA+3}, {3*SLOT}, v{WA+1}")
    a(f"v_and_b32 v{U0}, 1, v{Q}")
    a(f"v_lshlrev_b32 v{U0}, 3, v{U0}")
    a(f"v_lshrrev_b32 v{U2}, 1, v{Q}")
    a(f"v_lshl_add_u32 v{U2}, v{U2}, 2, v{U0}")
    a(f"v_lshl_add_u32 v{XH}, v{U2}, 1, v{XR}")
    a(f"v_subrev_u32 v{XH}, {4*576 - 256}, v{XH}")
    a(f"v_add_u32 v{U0}, v{U2}, v{I2}")
    a(f"v_mul_u32_u24 v{U0}, s45, v{U0}")
    a(f"v_lshl_add_u32 v{U0}, v{I3}, 3, v{U0}")
    a(f"v_add_u32 v{U0}, {RING + slot_of(22)*SLOT}, v{U0}")
    a(f"v_add_u32 v{WH}, v{U0}, v{U1}")
    a(f"v_sub_u32 v{WH+1}, v{U0}, v{U1}")
    a("s_movk_i32 s46, 864")
    a("s_movk_i32 s50, 29128")
    for s in range(NFULL):
        a(f"v_mul_u32_u24 v{U0}, s50, v{XC}")
        a(f"v_add_u32 v{XA+s}, v{XR}, v{XC}")
        a(f"v_lshrrev_b32 v{U0}, 23, v{U0}")
        a(f"v_add_u32 v{XC}, 64, v{XC}")
        a(f"v_mul_u32_u24 v{U0}, s46, v{U0}")
        a(f"v_subrev_u32 v{U2}, 1408, v{XC}")
        a(f"v_sub_u32 v{XA+s}, v{XA+s}, v{U0}")
        a(f"v_min_u32 v{XC}, v{XC}, v{U2}")
    a(f"v_lshl_add_u32 v{U0}, v{Q}, 2, v{I2}")
    a(f"v_mul_u32_u24 v{U0}, s44, v{U0}")
    a(f"v_add_u32 v{U0}, {WO_LDS}, v{U0}")
    a(f"v_lshl_add_u32 v{WOA}, v{I3}, 4, v{U0}")
    a(f"v_lshl_add_u32 v{WOA8}, v{I3}, 3, v{U0}")
    a("s_mul_i32 s41, s36, 9216")
    a(f"s_add_u32 s41, s41, {RING}")
    a(f"v_bfe_u32 v{U1}, v{TT}, 2, 1")
    a(f"v_xor_b32 v{U2}, v{U1}, v{Q}")
    a(f"v_lshl_add_u32 v{U2}, v{U2}, 4, s41")
    a(f"v_mad_u32_u24 v{OW}, v{TT}, s44, v{U2}")
    a(f"v_lshrrev_b32 v{U2}, 1, v{Q}")
    a(f"v_xor_b32 v{U2}, v{U2}, v{U1}")
    a(f"v_lshl_add_u32 v{U2}, v{U2}, 4, s41")
    a(f"v_and_b32 v{U3}, 1, v{Q}")
    a(f"v_lshl_add_u32 v{U2}, v{U3}, 3, v{U2}")
    a(f"v_mad_u32_u24 v{OW8}, v{TT}, s44, v{U2}")
    a(f"v_lshl_add_u32 v{OR_}, v{LANE}, 4, s41")
    a("s_lshl_b32 s40, s2, 7")
    a("s_lshl_b32 s41, s36, 4")
    a("s_add_u32 s40, s40, s41")
    a("s_mul_i32 s48, s40, 288")
    for n in range(5):
        a(f"v_add_u32 v{U0}, {64*n}, v{LANE}")
        a(f"v_mul_u32_u24 v{U1}, 58255, v{U0}")
        a(f"v_bfe_u32 v{U1}, v{U1}, 22, 1")
        a(f"v_xor_b32 v{U1}, v{U1}, v{U0}")
        a(f"v_lshl_add_u32 v{GA+n}, v{U1}, 4, s48")
    a("s_movk_i32 s49, 18432")
    a("s_mov_b32 s40, 0x4038aa3b\ns_mov_b32 s41, 0x4038aa3b")
    a("s_mov_b32 s42, 0xbfb8aa3b\ns_mov_b32 s43, 0xbfb8aa3b")
    a("s_mov_b32 s44, 0x42800000")

    q = []
    def rd(instr, tag):
        a(instr); q.append(tag)
    def need_n(tags):
        idx = -1
        for i, t in enumerate(q):
            if t in tags: idx = i
        if idx < 0: return None
        return len(q) - 1 - idx
    def need(tags, lo=9, hi=12):
        n = need_n(tags)
        if n is None: return
        keep = n if n < hi else lo
        a(f"s_waitcnt lgkmcnt({keep})")
        del q[:len(q)-keep]
    def readA(s, j, half=None):
        r = AF + 4*(j % 9)
        if s == 22:
            if half in (None, 0):
                rd(f"ds_read_b64_tr_b16 v[{r}:{r+1}], v{WH + (j&1)} offset:{j*32}", ("A", s, j))
            return
        sl = slot_of(s)
        base = WA + (j & 1) + (2 if sl >= 3 else 0)
        off = (sl % 3) * SLOT + j * 32
        if half in (None, 0):
            rd(f"ds_read_b64_tr_b16 v[{r}:{r+1}], v{base} offset:{off}", ("A", s, j))
        if half in (None, 1):
            rd(f"ds_read_b64_tr_b16 v[{r+2}:{r+3}], v{base} offset:{off+2304}", ("A", s, j))
    def readB(s, n=None):
        r = BF + 8*(s % 2)
        for nn in (0, 1):
            if n in (None, nn):
                if s == 22: rd(f"ds_read_b64 v[{r+4*nn}:{r+4*nn+1}], v{XH} offset:{nn*18432}", ("B", s, nn))
                else: rd(f"ds_read_b128 v[{r+4*nn}:{r+4*nn+3}], v{XA+s} offset:{nn*18432}", ("B", s, nn))

    items = [(n, d) for n in range(2) for d in range(5)]
    NI = len(items)
    mlist = [(i, o) for i in range(NI) for o in range(9)]
    def readO_ops(k):
        i, o = mlist[k]; n, d = items[i]
        r = OF + 4*(k % 7)
        base = WOA if o < 8 else WOA8
        off = d*32*288 + ((o//2)*64 + (o & 1)*8 if o < 8 else 256)
        ops = [(f"ds_read_b64_tr_b16 v[{r}:{r+1}], v{base} offset:{off}", ("O", k))]
        if d < 4:
            ops.append((f"ds_read_b64_tr_b16 v[{r+2}:{r+3}], v{base} offset:{off+16*288}", ("O", k)))
        return ops

    stamp()
    a("s_waitcnt vmcnt(0)")
    stamp()
    spinpt("b0")
    a("s_barrier")
    stamp()
    readB(0)
    for j in range(8): readA(0, j)
    for s in range(NSTEP):
        nxt = s + 1
        tail = []
        if s == 22:
            for k in range(7): tail += readO_ops(k)
        for j in range(18):
            need({("A", s, j), ("B", s, 0), ("B", s, 1)})
            for n in range(2):
                acc = ACC + (j*2+n)*4
                cop = "0" if s == 0 else f"v[{acc}:{acc+3}]"
                br = BF + 8*(s % 2) + 4*n
                ar = AF + 4*(j % 9)
                if s == 22:
                    a(f"v_mfma_f32_16x16x16_bf16 v[{acc}:{acc+3}], v[{ar}:{ar+1}], v[{br}:{br+1}], {cop}")
                else:
                    a(f"v_mfma_f32_16x16x32_bf16 v[{acc}:{acc+3}], v[{ar}:{ar+3}], v[{br}:{br+3}], {cop}")
                if j == 10 and n == 0 and (nxt in BARS or nxt == NSTEP) and "nobar" not in dbgm:
                    a("s_barrier")
                jj = j + 8
                if jj < 18: readA(s, jj, n)
                elif nxt < NSTEP: readA(nxt, jj - 18, n)
                elif tail and j >= 10: rd(*tail.pop(0))
                if n == 0 and j in (4, 6) and nxt < NSTEP: readB(nxt, (j - 4)//2)
        while tail: rd(*tail.pop(0))
        if s in (1, 3, 7): stamp("cst" in dbgm)
    stamp()
    spinpt("ml")
    def regs(i):
        n, d = items[i]
        js = [2*d, 2*d+1] if d < 4 else [8]
        f = []; g = []
        for j in js:
            f += [ACC + (j*2+n)*4 + r for r in range(4)]
            g += [ACC + ((j+9)*2+n)*4 + r for r in range(4)]
        return f, g
    def zreg(i): return BF + 4*(i % 4)
    def oacc(n, o): return (AF + 4*o) if n == 0 else (ACC + 8*o)
    def pr(r): return f"v[{r}:{r+1}]"
    def S1(i):
        f, g = regs(i); o = []
        for k in range(0, len(f), 2):
            o.append(f"v_pk_mul_f32 {pr(f[k])}, {pr(f[k])}, s[40:41]")
            o.append(f"v_pk_mul_f32 {pr(g[k])}, {pr(g[k])}, s[42:43]")
        return o
    def S2a(i):
        f, g = regs(i)
        return [f"v_min_f32 v{r}, s44, v{r}" for r in f]
    def S2b(i):
        f, g = regs(i)
        return [f"v_exp_f32 v{r}, v{r}" for r in g] + [f"v_exp_f32 v{r}, v{r}" for r in f]
    def S3(i):
        f, g = regs(i); o = []
        for k in range(0, len(f), 2): o.append(f"v_pk_add_f32 {pr(g[k])}, {pr(g[k])}, 1.0 op_sel_hi:[1,0]")
        for k in range(0, len(f), 2): o.append(f"v_pk_fma_f32 {pr(g[k])}, {pr(f[k])}, {pr(g[k])}, {pr(g[k])}")
        return o
    def S4(i):
        f, g = regs(i)
        return [f"v_rcp_f32 v{r}, v{r}" for r in g]
    def S5(i):
        f, g = regs(i)
        return [f"v_pk_fma_f32 {pr(f[k])}, {pr(f[k])}, {pr(g[k])}, {pr(g[k])} neg_lo:[0,0,1] neg_hi:[0,0,1]" for k in range(0, len(f), 2)]
    def S6(i):
        f, g = regs(i)
        return [f"v_cvt_pk_bf16_f32 v{zreg(i)+k//2}, v{f[k]}, v{f[k+1]}" for k in range(0, len(f), 2)]
    side = []
    def mfma2(k):
        i, o = mlist[k]; n, d = items[i]
        while any(op[0] == "l" and op[2] == ("O", k) for op in side): emit(side.pop(0))
        need({("O", k)}, lo=6, hi=8)
        r = OF + 4*(k % 7); acc = oacc(n, o); z = zreg(i)
        cop = "0" if d == 0 else f"v[{acc}:{acc+3}]"
        if d < 4:
            a(f"v_mfma_f32_16x16x32_bf16 v[{acc}:{acc+3}], v[{r}:{r+3}], v[{z}:{z+3}], {cop}")
        else:
            a(f"v_mfma_f32_16x16x16_bf16 v[{acc}:{acc+3}], v[{r}:{r+1}], v[{z}:{z+1}], {cop}")
        if k + 7 < len(mlist):
            for ins, tag in readO_ops(k+7): side.append(("l", ins, tag))
    def pbuf(n, idx): return ACC + 8*(9+idx)
    def out_cvt(n):
        ops = []
        for pp in range(4):
            p = pbuf(n, pp)
            a0, a1 = oacc(n, 2*pp), oacc(n, 2*pp+1)
            ops += [("v", f"v_cvt_pk_bf16_f32 v{p}, v{a0}, v{a0+1}"), ("v", f"v_cvt_pk_bf16_f32 v{p+1}, v{a0+2}, v{a0+3}"),
                    ("v", f"v_cvt_pk_bf16_f32 v{p+2}, v{a1}, v{a1+1}"), ("v", f"v_cvt_pk_bf16_f32 v{p+3}, v{a1+2}, v{a1+3}"),
                    ("l", f"ds_write_b128 v{OW}, v[{p}:{p+3}] offset:{n*4608 + pp*64}", ("OW", n))]
        p = pbuf(n, 4); a0 = oacc(n, 8)
        ops += [("v", f"v_cvt_pk_bf16_f32 v{p}, v{a0}, v{a0+1}"), ("v", f"v_cvt_pk_bf16_f32 v{p+1}, v{a0+2}, v{a0+3}"),
                ("l", f"ds_write_b64 v{OW8}, v[{p}:{p+1}] offset:{n*4608 + 256}", ("OW", n))]
        return ops
    def rbuf(n, idx): return oacc(n, idx)
    def out_read(n):
        return [("l", f"ds_read_b128 v[{rbuf(n,k)}:{rbuf(n,k)+3}], v{OR_} offset:{n*4608 + k*1024}", ("OR", n, k)) for k in range(5)]
    def out_store(n): return [("st", n, k) for k in range(5)]
    def emit(op):
        if op[0] == "v": a(op[1])
        elif op[0] == "l": rd(op[1], op[2])
        elif op[0] == "st":
            _, n, k = op
            need({("OR", n, k)})
            so = "0" if n == 0 else "s49"
            if k == 4: a("s_mov_b32 exec_hi, 0")
            a(f"buffer_store_dwordx4 v[{rbuf(n,k)}:{rbuf(n,k)+3}], v{GA+k}, s[28:31], {so} offen {opol}")
            if k == 4: a("s_mov_b32 exec_hi, -1")
    for r in range(NI + 2):
        pk = []
        if r < NI: pk += S1(r)
        else: pk += ["s_nop 0"]
        if 0 <= r-1 < NI: pk += S3(r-1)
        if 0 <= r-2 < NI: pk += S5(r-2)
        for ln in pk: a(ln)
        if 0 <= r-2 < NI:
            for x in S6(r-2): a(x)
        if r < NI:
            for x in S2a(r): a(x)
        else:
            a("s_nop 1")
        if r == 7:
            for op in out_cvt(0): emit(op)
            side.extend(out_read(0))
        if r == 8: side.extend(out_store(0))
        tr = []
        if 0 <= r-1 < NI: tr += S4(r-1)
        if r < NI: tr += S2b(r)
        ms = [k for k, (i, o) in enumerate(mlist) if i == r-2]
        pos = {}
        span = max(len(tr) - 1, 0)
        for m, k in enumerate(ms):
            pos.setdefault((m*span)//9, []).append(k)
        for idx in range(len(tr) + 1):
            for k in pos.get(idx, []):
                mfma2(k)
                for _ in range(3 if len(side) > 2 else 2):
                    if side: emit(side.pop(0))
            if idx < len(tr):
                a(tr[idx])
    while side: emit(side.pop(0))
    stamp()
    a("s_nop 7")
    for op in out_cvt(1): emit(op)
    for op in out_read(1): emit(op)
    for op in out_store(1): emit(op)
    stamp()
    if stamps or spin.startswith("end"):
        a("s_waitcnt vmcnt(0)")
    stamp()
    spinpt("end")
    stamp_store()
    a("s_endpgm")

    a("L_loader:")
    VD, VD0 = T + 2, T + 3
    a("s_and_b32 s40, s39, 1")
    a("s_mul_i32 s46, s40, 4608")
    a("s_lshl_b32 s40, s40, 1")
    a(f"v_xor_b32 v{VD}, s40, v{LANE}")
    a(f"v_lshlrev_b32 v{VD}, 4, v{VD}")
    a(f"v_lshlrev_b32 v{VD0}, 4, v{LANE}")
    a("s_mul_i32 s41, s39, 4608")
    a(f"s_mul_i32 s43, s37, {SLOT}")
    a("s_add_u32 s43, s43, s41")
    a(f"s_add_u32 s45, s41, {NFULL*SLOT}")
    a("s_mov_b32 s22, 414720\ns_mov_b32 s23, 0x20000")
    a("s_mov_b32 s26, 41472\ns_mov_b32 s27, 0x20000")
    a("s_waitcnt lgkmcnt(0)")
    a("s_mov_b32 s20, s6\ns_mov_b32 s21, s7")
    a("s_mov_b32 s24, s8\ns_mov_b32 s25, s9")
    vq = []
    def issue_step(s, wpol=wpol):
        if w0pol is not None and s < nfirst: wpol = w0pol
        cb = "s41"
        if s == 22:
            a(f"s_add_u32 s43, s46, {NFULL*SLOT}")
            cb = "s46"
        a(f"s_add_u32 m0, {cb}, {RING + slot_of(s)*SLOT}")
        a("s_add_u32 s44, s43, 4096")
        for n in range(4):
            a(f"buffer_load_dwordx4 v{VD}, s[20:23], s43 offen offset:{n*1024} {wpol} lds")
        a(f"s_add_u32 m0, {cb}, {RING + slot_of(s)*SLOT + 4096}")
        a("s_mov_b32 exec_hi, 0")
        a(f"buffer_load_dwordx4 v{VD}, s[20:23], s44 offen {wpol} lds")
        a("s_mov_b32 exec_hi, -1")
        if s < 21:
            a(f"s_add_u32 s43, s43, {SLOT}")
            a("s_cmp_eq_u32 s43, s45")
            a("s_cselect_b32 s43, s41, s43")
        vq.extend([s]*5)
    def issue_wo():
        a("s_mul_i32 s43, s39, 10368")
        for b in range(3):
            a(f"s_add_u32 m0, s43, {WO_LDS}")
            a("s_nop 0")
            for n in range(4):
                p = b*4 + n
                if p < 10:
                    a(f"buffer_load_dwordx4 v{VD0}, s[24:27], s43 offen offset:{n*1024} lds")
                elif p == 10:
                    a("s_mov_b64 exec, 0xff")
                    a(f"buffer_load_dwordx4 v{VD0}, s[24:27], s43 offen offset:{n*1024} lds")
                    a("s_mov_b64 exec, -1")
            a("s_add_u32 s43, s43, 4096")
        vq.extend([23]*11)
    def vneed(upto):
        idx = max([i for i, t in enumerate(vq) if t <= upto and t >= 0], default=-1)
        if idx < 0: return
        n = len(vq) - 1 - idx
        a(f"s_waitcnt vmcnt({n})")
        del vq[:idx+1]
    def spf_w(i0, i1):
        for i in range(i0, i1):
            a(f"s_buffer_load_dword s54, s[20:23], s52 offset:{i*15872}")
    if spf:
        a("s_lshr_b32 s52, s2, 3")
        a("s_min_u32 s52, s52, 30")
        a("s_lshl_b32 s52, s52, 2")
        a("s_add_u32 s52, s52, s39")
        a("s_lshl_b32 s52, s52, 7")
        spf_w(1, spf)
        a("s_getpc_b64 s[50:51]")
        a("L_pc2:")
        a("s_sub_u32 s50, s50, L_pc2-" + KNAME)
        a("s_subb_u32 s51, s51, 0")
        a(f"s_min_u32 s53, s52, L_code_end-{KNAME}-15872-4")
        a("s_load_dword s54, s[50:51], s52")
        a("s_load_dword s54, s[50:51], s53 offset:15872")
    issue_step(0)
    if wfirst:
        a("s_barrier")
        a(f"s_sleep {slp0}")
    stamp0()
    if pf:
        a("s_getpc_b64 s[50:51]")
        a("L_pc:")
        a("s_sub_u32 s50, s50, L_pc-" + KNAME)
        a("s_subb_u32 s51, s51, 0")
        a(f"v_subrev_u32 v1, 256, v0")
        a(f"v_lshlrev_b32 v1, 7, v1")
        a(f"v_min_u32 v1, L_code_end-{KNAME}-4, v1")
        a("global_load_dword v2, v1, s[50:51]")
        vq.append(-1)
    def w_prefetch():
        a("s_lshr_b32 s52, s2, 3")
        a("s_min_u32 s52, s52, 30")
        a("s_mul_i32 s52, s52, 104")
        a("s_mul_i32 s53, s39, 26")
        a("s_add_u32 s52, s52, s53")
        a(f"v_add_u32 v3, s52, v{LANE}")
        a("v_lshlrev_b32 v3, 7, v3")
        a(f"v_add_u32 v4, {3*SLOT}, v3")
        a(f"v_subrev_u32 v5, {2808*128}, v3")
        a("s_mov_b64 exec, 0x3ffffff")
        a("buffer_load_dword v6, v4, s[20:23], 0 offen")
        a("buffer_load_dword v7, v5, s[24:27], 0 offen")
        a("s_mov_b64 exec, -1")
        vq.extend([-1, -1])
    nxt_issue = 1
    if wpf == 1: w_prefetch()
    while nxt_issue < pre:
        issue_step(nxt_issue); nxt_issue += 1
        if wpf == nxt_issue: w_prefetch()
    stamp(lst)
    allb = BARS + [NSTEP]
    for bi, b in enumerate(allb):
        upto = (allb[bi+1] - 1) if bi + 1 < len(allb) else 23
        assert nxt_issue > upto, (b, upto, nxt_issue)
        vneed(upto)
        stamp(lst)
        if bi == 0 or "nobar" not in dbgm: a("s_barrier")
        else: a(f"s_sleep {7*(allb[bi]-allb[bi-1])}")
        if spf:
            if bi == 0:
                rem = [f"s_buffer_load_dword s54, s[20:23], s52 offset:{i*15872}" for i in range(spf, 27)]
                rem += [f"s_buffer_load_dword s54, s[24:27], s52 offset:{i*15872}" for i in range(3)]
            for _ in range(4):
                if rem: a(rem.pop(0))
        lim = max(b + 4, 5)
        budget = 2*(allb[bi+1] - b) if bi + 1 < len(allb) else 0
        if bi == 0: budget = b0bud
        cnt = 0
        while nxt_issue <= min(lim, 22) and cnt < budget:
            issue_step(nxt_issue); nxt_issue += 1; cnt += 1
        if nxt_issue == 23 and b - 2 >= 18:
            issue_wo(); nxt_issue = 24
    stamp()
    stamp_store()
    a("L_end:")
    a("s_endpgm")
    a("L_code_end:")
    return wrap(a.text(), 250, 512, LDS_TOTAL, 256)

if __name__ == "__main__":
    out = sys.argv[1]
    kw = {}
    for arg in sys.argv[2:]:
        k, _, v = arg.partition("=")
        if v == "": kw[k] = True
        elif k in ("bint", "pre", "nfirst", "b0bud", "wpf", "slp0", "spf"): kw[k] = int(v)
        elif v in ("0", "1"): kw[k] = bool(int(v))
        else: kw[k] = v.replace("+", " ") if v != "none" else ""
    open(out, "w").write(gen(**kw))
```

```python
import sys
from common import *

XREG = 0
RING = 39168
SLOT = 18432
NSLOT = 6
WO_LDS = RING + 4 * SLOT
LDS_TOTAL = WO_LDS + 41472
NFULL = 22
NSTEP = 23
def slot_of(s): return (s + 5) % NSLOT

def gen(stamps=False, rot=True, xpol="nt", wpol="", opol="sc1", pf=True, spin="", bint=1, pre=2, dbgm="", lst=False, w0pol=None, nfirst=6, b0bud=1, wfirst=True, wpf=-1, slp0=8, spf=0):
    a = Asm()
    ACC = 0
    AF = 144
    BF = 180
    WA = 196
    WH = 200
    XH = 202
    WOA, WOA8, OW, OW8, OR_ = 204, 205, 206, 207, 208
    GA = 209
    LANE = 218
    STV = 220
    T = 222
    OF = 228
    XA = 228
    stamp_n = [0]
    def stamp(force=True):
        if not stamps or not force: return
        i = stamp_n[0]; stamp_n[0] += 1
        a(f"s_memtime s[60:61]")
        a(f"s_memrealtime s[62:63]")
        a("s_waitcnt lgkmcnt(0)")
        a(f"v_writelane_b32 v{STV}, s60, {i}")
        a(f"v_writelane_b32 v{STV+1}, s62, {i}")
    def stamp_store():
        if not stamps: return
        a("s_lshl_b32 s60, s2, 3")
        a("s_add_u32 s60, s60, s36")
        a("s_lshl_b32 s60, s60, 9")
        a(f"v_lshlrev_b32 v{T}, 2, v{LANE}")
        a(f"v_add_u32 v{T}, s60, v{T}")
        a(f"buffer_store_dword v{STV}, v{T}, s[32:35], 0 offen")
        a(f"buffer_store_dword v{STV+1}, v{T}, s[32:35], 0 offen offset:256")
    def stamp0():
        if stamps:
            a(f"v_writelane_b32 v{STV}, s60, 0")
            a(f"v_writelane_b32 v{STV+1}, s62, 0")
            stamp_n[0] = 1
            a("s_mov_b32 s32, s14\ns_mov_b32 s33, s15\ns_mov_b32 s34, 0x1000000\ns_mov_b32 s35, 0x20000")
    def spinpt(name):
        if not spin: return
        pt, _, t = spin.partition("@")
        if pt != name: return
        a("L_spin:")
        a("s_memrealtime s[66:67]")
        a("s_waitcnt lgkmcnt(0)")
        a("s_sub_u32 s66, s66, s64")
        a(f"s_cmp_lt_u32 s66, {int(float(t)*100)}")
        a("s_cbranch_scc1 L_spin")

    BARS = [0]
    b = 1
    while b < NSTEP:
        BARS.append(b)
        b += 1 if b < 3 else bint
    a("s_load_dwordx8 s[4:11], s[0:1], 0")
    a("s_cmp_ge_u32 s2, 250")
    a("s_cbranch_scc1 L_end")
    if spin:
        a("s_memrealtime s[64:65]")
    if stamps:
        a("s_load_dwordx2 s[14:15], s[0:1], 40")
        a(f"s_memtime s[60:61]")
        a(f"s_memrealtime s[62:63]")
        a(f"v_mov_b32 v{STV}, 0\nv_mov_b32 v{STV+1}, 0")
    a(f"v_lshrrev_b32 v{T}, 6, v0")
    a(f"v_and_b32 v{LANE}, 63, v0")
    npf = 0
    if pf:
        a("s_getpc_b64 s[50:51]")
        a("L_pc:")
        a("s_bfe_u32 s52, s2, 0x20003")
        a("s_lshl_b32 s52, s52, 6")
        a(f"v_lshl_add_u32 v1, v{T}, 3, v{LANE}")
        a("v_add_lshl_u32 v1, v1, s52, 7")
        a(f"v_min_u32 v1, L_code_end-L_pc-4, v1")
        a("s_mov_b64 exec, 0xff")
        a("global_load_dword v2, v1, s[50:51]")
        a("s_mov_b64 exec, -1")
        npf = 1
    a(f"v_readfirstlane_b32 s36, v{T}")
    a(f"v_and_b32 v{T+1}, 2, v{T}")
    a(f"v_xor_b32 v{T+1}, v{T+1}, v{LANE}")
    a(f"v_lshlrev_b32 v{T+1}, 4, v{T+1}")
    a("s_mul_i32 s41, s2, 36864")
    a("s_sub_u32 s41, s41, 2304")
    a("s_cmp_eq_u32 s2, 0")
    a("s_cselect_b32 s42, 144, 0")
    a("s_cmp_eq_u32 s2, 125")
    a("s_cselect_b32 s42, 144, s42")
    a(f"v_lshl_add_u32 v{T+2}, v0, 4, s41")
    a(f"v_cmp_gt_u32 vcc, s42, v0")
    a(f"v_mov_b32 v{T+4}, 0x7fff0000")
    a(f"v_add_u32 v{T+5}, 8192, v{T+2}")
    a(f"v_cndmask_b32 v{T+3}, v{T+2}, v{T+4}, vcc")
    a(f"v_cmp_gt_u32 vcc, 400, v0")
    a("s_mul_i32 s43, s36, 2304")
    a("s_lshl_b32 s44, s36, 10")
    a("s_mov_b32 s18, 9216000\ns_mov_b32 s19, 0x20000")
    a("s_mov_b32 s22, 414720\ns_mov_b32 s23, 0x20000")
    a(f"s_add_u32 m0, s43, {RING + slot_of(0)*SLOT}")
    a("s_mov_b64 s[56:57], vcc")
    a("s_waitcnt lgkmcnt(0)")
    a("s_mov_b32 s20, s6\ns_mov_b32 s21, s7")
    a("s_mov_b32 s16, s4\ns_mov_b32 s17, s5")
    a(f"buffer_load_dwordx4 v{T+1}, s[20:23], s43 offen {wpol} lds")
    a(f"buffer_load_dwordx4 v{T+1}, s[20:23], s43 offen offset:1024 {wpol} lds")
    a("s_mov_b64 exec, 0xffff")
    a(f"buffer_load_dwordx4 v{T+1}, s[20:23], s43 offen offset:2048 {wpol} lds")
    a("s_mov_b64 exec, -1")
    a("s_mov_b32 m0, s44")
    a("s_movk_i32 s45, 8192")
    a(f"buffer_load_dwordx4 v{T+3}, s[16:19], 0 offen {xpol} lds")
    a("s_add_u32 m0, s44, 8192")
    a("s_movk_i32 s46, 16384")
    a(f"buffer_load_dwordx4 v{T+5}, s[16:19], 0 offen {xpol} lds")
    a("s_add_u32 m0, s44, 16384")
    a("s_movk_i32 s47, 24576")
    a(f"buffer_load_dwordx4 v{T+5}, s[16:19], s45 offen {xpol} lds")
    a("s_add_u32 m0, s44, 24576")
    a("s_and_b32 s39, s36, 3")
    a(f"buffer_load_dwordx4 v{T+5}, s[16:19], s46 offen {xpol} lds")
    a("s_add_u32 m0, s44, 32768")
    a("s_mov_b64 exec, s[56:57]")
    a("s_cbranch_execz L_skipx")
    a(f"buffer_load_dwordx4 v{T+5}, s[16:19], s47 offen {xpol} lds")
    a("L_skipx:")
    a("s_mov_b64 exec, -1")
    stamp0()
    a("s_cmp_lt_u32 s36, 4")
    a("s_cbranch_scc1 L_compute")
    LOADER_MARK = len(a.L)
    a("L_compute:")
    a("s_mov_b32 s28, s10\ns_mov_b32 s29, s11\ns_mov_b32 s30, 9216000\ns_mov_b32 s31, 0x20000")
    stamp()
    Q, TT, I2, I3 = 4, 5, 6, 7
    U0, U1, U2, U3 = 8, 9, 10, 11
    XA, XM = 214, 215
    a(f"v_lshrrev_b32 v{Q}, 4, v{LANE}")
    a(f"v_and_b32 v{TT}, 15, v{LANE}")
    a(f"v_bfe_u32 v{I2}, v{LANE}, 2, 2")
    a(f"v_and_b32 v{I3}, 3, v{LANE}")
    a("s_movk_i32 s44, 288")
    a("s_movk_i32 s45, 576")
    a("s_lshl_b32 s40, s36, 4")
    a(f"v_add_u32 v{U0}, s40, v{TT}")
    a(f"v_mul_u32_u24 v{U3}, s44, v{U0}")
    a(f"v_lshl_add_u32 v{XA}, v{Q}, 4, v{U3}")
    a(f"v_lshrrev_b32 v{U2}, 1, v{Q}")
    a(f"v_mul_u32_u24 v{U0}, 864, v{U2}")
    a(f"v_sub_u32 v{XM}, v{XA}, v{U0}")
    a(f"v_add_u32 v{XM}, 832, v{XM}")
    a(f"v_lshl_add_u32 v{U0}, v{Q}, 3, v{I2}")
    a(f"v_mul_u32_u24 v{U0}, s45, v{U0}")
    a(f"v_lshl_add_u32 v{U0}, v{I3}, 3, v{U0}")
    a(f"v_and_b32 v{U1}, 1, v{Q}")
    a(f"v_lshlrev_b32 v{U1}, 5, v{U1}")
    a(f"v_add_u32 v{U0}, {RING}, v{U0}")
    a(f"v_add_u32 v{WA}, v{U0}, v{U1}")
    a(f"v_sub_u32 v{WA+1}, v{U0}, v{U1}")
    a(f"v_add_u32 v{WA+2}, {3*SLOT}, v{WA}")
    a(f"v_add_u32 v{WA+3}, {3*SLOT}, v{WA+1}")
    a(f"v_lshrrev_b32 v{U0}, 2, v{U1}")
    a(f"v_lshl_add_u32 v{U2}, v{U2}, 2, v{U0}")
    a(f"v_lshl_add_u32 v{XH}, v{U2}, 1, v{U3}")
    a(f"v_add_u32 v{U0}, v{U2}, v{I2}")
    a(f"v_mul_u32_u24 v{U0}, s45, v{U0}")
    a(f"v_lshl_add_u32 v{U0}, v{I3}, 3, v{U0}")
    a(f"v_add_u32 v{U0}, {RING + slot_of(22)*SLOT}, v{U0}")
    a(f"v_add_u32 v{WH}, v{U0}, v{U1}")
    a(f"v_sub_u32 v{WH+1}, v{U0}, v{U1}")
    a(f"v_lshl_add_u32 v{U0}, v{Q}, 2, v{I2}")
    a(f"v_mul_u32_u24 v{U0}, s44, v{U0}")
    a(f"v_add_u32 v{U0}, {WO_LDS}, v{U0}")
    a(f"v_lshl_add_u32 v{WOA}, v{I3}, 4, v{U0}")
    a(f"v_lshl_add_u32 v{WOA8}, v{I3}, 3, v{U0}")
    a("s_mul_i32 s41, s36, 9216")
    a(f"s_add_u32 s41, s41, {RING}")
    a(f"v_bfe_u32 v{U1}, v{TT}, 2, 1")
    a(f"v_xor_b32 v{U2}, v{U1}, v{Q}")
    a(f"v_lshl_add_u32 v{U2}, v{U2}, 4, s41")
    a(f"v_mad_u32_u24 v{OW}, v{TT}, s44, v{U2}")
    a(f"v_lshrrev_b32 v{U2}, 1, v{Q}")
    a(f"v_xor_b32 v{U2}, v{U2}, v{U1}")
    a(f"v_lshl_add_u32 v{U2}, v{U2}, 4, s41")
    a(f"v_and_b32 v{U3}, 1, v{Q}")
    a(f"v_lshl_add_u32 v{U2}, v{U3}, 3, v{U2}")
    a(f"v_mad_u32_u24 v{OW8}, v{TT}, s44, v{U2}")
    a(f"v_lshl_add_u32 v{OR_}, v{LANE}, 4, s41")
    a("s_lshl_b32 s40, s2, 7")
    a("s_lshl_b32 s41, s36, 4")
    a("s_add_u32 s40, s40, s41")
    a("s_mul_i32 s48, s40, 288")
    for n in range(5):
        a(f"v_add_u32 v{U0}, {64*n}, v{LANE}")
        a(f"v_mul_u32_u24 v{U1}, 58255, v{U0}")
        a(f"v_bfe_u32 v{U1}, v{U1}, 22, 1")
        a(f"v_xor_b32 v{U1}, v{U1}, v{U0}")
        a(f"v_lshl_add_u32 v{GA+n}, v{U1}, 4, s48")
    a("s_movk_i32 s49, 18432")
    a("s_mov_b32 s40, 0x4038aa3b\ns_mov_b32 s41, 0x4038aa3b")
    a("s_mov_b32 s42, 0xbfb8aa3b\ns_mov_b32 s43, 0xbfb8aa3b")
    a("s_mov_b32 s44, 0x42800000")

    q = []
    def rd(instr, tag):
        a(instr); q.append(tag)
    def need_n(tags):
        idx = -1
        for i, t in enumerate(q):
            if t in tags: idx = i
        if idx < 0: return None
        return len(q) - 1 - idx
    def need(tags, lo=9, hi=12):
        n = need_n(tags)
        if n is None: return
        keep = n if n < hi else lo
        a(f"s_waitcnt lgkmcnt({keep})")
        del q[:len(q)-keep]
    def readA(s, j, half=None):
        r = AF + 4*(j % 9)
        if s == 22:
            if half in (None, 0):
                rd(f"ds_read_b64_tr_b16 v[{r}:{r+1}], v{WH + (j&1)} offset:{j*32}", ("A", s, j))
            return
        sl = slot_of(s)
        base = WA + (j & 1) + (2 if sl >= 3 else 0)
        off = (sl % 3) * SLOT + j * 32
        if half in (None, 0):
            rd(f"ds_read_b64_tr_b16 v[{r}:{r+1}], v{base} offset:{off}", ("A", s, j))
        if half in (None, 1):
            rd(f"ds_read_b64_tr_b16 v[{r+2}:{r+3}], v{base} offset:{off+2304}", ("A", s, j))
    def readB(s, n=None):
        r = BF + 8*(s % 2)
        for nn in (0, 1):
            if n in (None, nn):
                k = 32*s; tap = k // 144
                if s == 22: rd(f"ds_read_b64 v[{r+4*nn}:{r+4*nn+1}], v{XH} offset:{256 + nn*18432}", ("B", s, nn))
                elif (k + 16) // 144 != tap:
                    rd(f"ds_read_b128 v[{r+4*nn}:{r+4*nn+3}], v{XM} offset:{576*(4-(tap+1)) + nn*18432}", ("B", s, nn))
                else:
                    rd(f"ds_read_b128 v[{r+4*nn}:{r+4*nn+3}], v{XA} offset:{2*(k-144*tap) + 576*(4-tap) + nn*18432}", ("B", s, nn))

    items = [(n, d) for n in range(2) for d in range(5)]
    NI = len(items)
    mlist = [(i, o) for i in range(NI) for o in range(9)]
    def readO_ops(k):
        i, o = mlist[k]; n, d = items[i]
        r = OF + 4*(k % 7)
        base = WOA if o < 8 else WOA8
        off = d*32*288 + ((o//2)*64 + (o & 1)*8 if o < 8 else 256)
        ops = [(f"ds_read_b64_tr_b16 v[{r}:{r+1}], v{base} offset:{off}", ("O", k))]
        if d < 4:
            ops.append((f"ds_read_b64_tr_b16 v[{r+2}:{r+3}], v{base} offset:{off+16*288}", ("O", k)))
        return ops

    stamp()
    a("s_waitcnt vmcnt(0)")
    stamp()
    spinpt("b0")
    a("s_barrier")
    stamp()
    readB(0)
    for j in range(8): readA(0, j)
    for s in range(NSTEP):
        nxt = s + 1
        tail = []
        if s == 22:
            for k in range(7): tail += readO_ops(k)
        for j in range(18):
            need({("A", s, j), ("B", s, 0), ("B", s, 1)})
            for n in range(2):
                acc = ACC + (j*2+n)*4
                cop = "0" if s == 0 else f"v[{acc}:{acc+3}]"
                br = BF + 8*(s % 2) + 4*n
                ar = AF + 4*(j % 9)
                if s == 22:
                    a(f"v_mfma_f32_16x16x16_bf16 v[{acc}:{acc+3}], v[{ar}:{ar+1}], v[{br}:{br+1}], {cop}")
                else:
                    a(f"v_mfma_f32_16x16x32_bf16 v[{acc}:{acc+3}], v[{ar}:{ar+3}], v[{br}:{br+3}], {cop}")
                if j == 10 and n == 0 and (nxt in BARS or nxt == NSTEP) and "nobar" not in dbgm:
                    a("s_barrier")
                jj = j + 8
                if jj < 18: readA(s, jj, n)
                elif nxt < NSTEP: readA(nxt, jj - 18, n)
                elif tail and j >= 10: rd(*tail.pop(0))
                if n == 0 and j in (4, 6) and nxt < NSTEP: readB(nxt, (j - 4)//2)
        while tail: rd(*tail.pop(0))
        if s in (1, 3, 7): stamp("cst" in dbgm)
    stamp()
    spinpt("ml")
    def regs(i):
        n, d = items[i]
        js = [2*d, 2*d+1] if d < 4 else [8]
        f = []; g = []
        for j in js:
            f += [ACC + (j*2+n)*4 + r for r in range(4)]
            g += [ACC + ((j+9)*2+n)*4 + r for r in range(4)]
        return f, g
    def zreg(i): return BF + 4*(i % 4)
    def oacc(n, o): return (AF + 4*o) if n == 0 else (ACC + 8*o)
    def pr(r): return f"v[{r}:{r+1}]"
    def S1(i):
        f, g = regs(i); o = []
        for k in range(0, len(f), 2):
            o.append(f"v_pk_mul_f32 {pr(f[k])}, {pr(f[k])}, s[40:41]")
            o.append(f"v_pk_mul_f32 {pr(g[k])}, {pr(g[k])}, s[42:43]")
        return o
    def S2a(i):
        f, g = regs(i)
        return [f"v_min_f32 v{r}, s44, v{r}" for r in f]
    def S2b(i):
        f, g = regs(i)
        return [f"v_exp_f32 v{r}, v{r}" for r in g] + [f"v_exp_f32 v{r}, v{r}" for r in f]
    def S3(i):
        f, g = regs(i); o = []
        for k in range(0, len(f), 2): o.append(f"v_pk_add_f32 {pr(g[k])}, {pr(g[k])}, 1.0 op_sel_hi:[1,0]")
        for k in range(0, len(f), 2): o.append(f"v_pk_fma_f32 {pr(g[k])}, {pr(f[k])}, {pr(g[k])}, {pr(g[k])}")
        return o
    def S4(i):
        f, g = regs(i)
        return [f"v_rcp_f32 v{r}, v{r}" for r in g]
    def S5(i):
        f, g = regs(i)
        return [f"v_pk_fma_f32 {pr(f[k])}, {pr(f[k])}, {pr(g[k])}, {pr(g[k])} neg_lo:[0,0,1] neg_hi:[0,0,1]" for k in range(0, len(f), 2)]
    def S6(i):
        f, g = regs(i)
        return [f"v_cvt_pk_bf16_f32 v{zreg(i)+k//2}, v{f[k]}, v{f[k+1]}" for k in range(0, len(f), 2)]
    side = []
    def mfma2(k):
        i, o = mlist[k]; n, d = items[i]
        while any(op[0] == "l" and op[2] == ("O", k) for op in side): emit(side.pop(0))
        need({("O", k)}, lo=6, hi=8)
        r = OF + 4*(k % 7); acc = oacc(n, o); z = zreg(i)
        cop = "0" if d == 0 else f"v[{acc}:{acc+3}]"
        if d < 4:
            a(f"v_mfma_f32_16x16x32_bf16 v[{acc}:{acc+3}], v[{r}:{r+3}], v[{z}:{z+3}], {cop}")
        else:
            a(f"v_mfma_f32_16x16x16_bf16 v[{acc}:{acc+3}], v[{r}:{r+1}], v[{z}:{z+1}], {cop}")
        if k + 7 < len(mlist):
            for ins, tag in readO_ops(k+7): side.append(("l", ins, tag))
    def pbuf(n, idx): return ACC + 8*(9+idx)
    def out_cvt(n):
        ops = []
        for pp in range(4):
            p = pbuf(n, pp)
            a0, a1 = oacc(n, 2*pp), oacc(n, 2*pp+1)
            ops += [("v", f"v_cvt_pk_bf16_f32 v{p}, v{a0}, v{a0+1}"), ("v", f"v_cvt_pk_bf16_f32 v{p+1}, v{a0+2}, v{a0+3}"),
                    ("v", f"v_cvt_pk_bf16_f32 v{p+2}, v{a1}, v{a1+1}"), ("v", f"v_cvt_pk_bf16_f32 v{p+3}, v{a1+2}, v{a1+3}"),
                    ("l", f"ds_write_b128 v{OW}, v[{p}:{p+3}] offset:{n*4608 + pp*64}", ("OW", n))]
        p = pbuf(n, 4); a0 = oacc(n, 8)
        ops += [("v", f"v_cvt_pk_bf16_f32 v{p}, v{a0}, v{a0+1}"), ("v", f"v_cvt_pk_bf16_f32 v{p+1}, v{a0+2}, v{a0+3}"),
                ("l", f"ds_write_b64 v{OW8}, v[{p}:{p+1}] offset:{n*4608 + 256}", ("OW", n))]
        return ops
    def rbuf(n, idx): return oacc(n, idx)
    def out_read(n):
        return [("l", f"ds_read_b128 v[{rbuf(n,k)}:{rbuf(n,k)+3}], v{OR_} offset:{n*4608 + k*1024}", ("OR", n, k)) for k in range(5)]
    def out_store(n): return [("st", n, k) for k in range(5)]
    def emit(op):
        if op[0] == "v": a(op[1])
        elif op[0] == "l": rd(op[1], op[2])
        elif op[0] == "st":
            _, n, k = op
            need({("OR", n, k)})
            so = "0" if n == 0 else "s49"
            if k == 4: a("s_mov_b32 exec_hi, 0")
            a(f"buffer_store_dwordx4 v[{rbuf(n,k)}:{rbuf(n,k)+3}], v{GA+k}, s[28:31], {so} offen {opol}")
            if k == 4: a("s_mov_b32 exec_hi, -1")
    for r in range(NI + 2):
        pk = []
        if r < NI: pk += S1(r)
        else: pk += ["s_nop 0"]
        if 0 <= r-1 < NI: pk += S3(r-1)
        if 0 <= r-2 < NI: pk += S5(r-2)
        for ln in pk: a(ln)
        if 0 <= r-2 < NI:
            for x in S6(r-2): a(x)
        if r < NI:
            for x in S2a(r): a(x)
        else:
            a("s_nop 1")
        if r == 7:
            for op in out_cvt(0): emit(op)
            side.extend(out_read(0))
        if r == 8: side.extend(out_store(0))
        tr = []
        if 0 <= r-1 < NI: tr += S4(r-1)
        if r < NI: tr += S2b(r)
        ms = [k for k, (i, o) in enumerate(mlist) if i == r-2]
        pos = {}
        span = max(len(tr) - 1, 0)
        for m, k in enumerate(ms):
            pos.setdefault((m*span)//9, []).append(k)
        for idx in range(len(tr) + 1):
            for k in pos.get(idx, []):
                mfma2(k)
                for _ in range(3 if len(side) > 2 else 2):
                    if side: emit(side.pop(0))
            if idx < len(tr):
                a(tr[idx])
    while side: emit(side.pop(0))
    stamp()
    a("s_nop 7")
    for op in out_cvt(1): emit(op)
    for op in out_read(1): emit(op)
    for op in out_store(1): emit(op)
    stamp()
    if stamps or spin.startswith("end"):
        a("s_waitcnt vmcnt(0)")
    stamp()
    spinpt("end")
    stamp_store()
    a("s_endpgm")

    a("L_end:")
    a("s_endpgm")
    a("L_code_end:")
    main_L = a.L
    a.L = []
    stamp_n[0] = 1
    VD, VD0 = T + 2, T + 3
    a("s_and_b32 s40, s39, 1")
    a("s_mul_i32 s46, s40, 4608")
    a("s_lshl_b32 s40, s40, 1")
    a(f"v_xor_b32 v{VD}, s40, v{LANE}")
    a(f"v_lshlrev_b32 v{VD}, 4, v{VD}")
    a(f"v_lshlrev_b32 v{VD0}, 4, v{LANE}")
    a("s_mul_i32 s41, s39, 4608")
    a("s_mov_b32 s26, 41472\ns_mov_b32 s27, 0x20000")
    a("s_mov_b32 s24, s8\ns_mov_b32 s25, s9")
    vq = [0]
    def issue_step(s):
        cb = "s46" if s == 22 else "s41"
        a(f"s_add_u32 m0, {cb}, {RING + slot_of(s)*SLOT}")
        a(f"s_add_u32 s43, {cb}, {s*SLOT}")
        for n in range(4):
            a(f"buffer_load_dwordx4 v{VD}, s[20:23], s43 offen offset:{n*1024} {wpol} lds")
        a(f"s_add_u32 m0, m0, 4096")
        a("s_add_u32 s43, s43, 4096")
        a("s_mov_b32 exec_hi, 0")
        a(f"buffer_load_dwordx4 v{VD}, s[20:23], s43 offen {wpol} lds")
        a("s_mov_b32 exec_hi, -1")
        vq.extend([s]*5)
    def issue_wo():
        a("s_mul_i32 s43, s39, 10368")
        for b in range(3):
            a(f"s_add_u32 m0, s43, {WO_LDS}")
            a("s_nop 0")
            for n in range(4):
                p = b*4 + n
                if p < 10:
                    a(f"buffer_load_dwordx4 v{VD0}, s[24:27], s43 offen offset:{n*1024} lds")
                elif p == 10:
                    a("s_mov_b64 exec, 0xff")
                    a(f"buffer_load_dwordx4 v{VD0}, s[24:27], s43 offen offset:{n*1024} lds")
                    a("s_mov_b64 exec, -1")
            a("s_add_u32 s43, s43, 4096")
        vq.extend([23]*11)
    def vneed(upto):
        idx = max([i for i, t in enumerate(vq) if t <= upto and t >= 0], default=-1)
        if idx < 0: return
        n = len(vq) - 1 - idx
        a(f"s_waitcnt vmcnt({n})")
        del vq[:idx+1]
    nxt_issue = 1
    while nxt_issue < pre:
        issue_step(nxt_issue); nxt_issue += 1
    stamp(lst)
    allb = BARS + [NSTEP]
    for bi, b in enumerate(allb):
        upto = (allb[bi+1] - 1) if bi + 1 < len(allb) else 23
        assert nxt_issue > upto, (b, upto, nxt_issue)
        vneed(upto)
        stamp(lst)
        a("s_barrier")
        lim = max(b + 4, 5)
        budget = 2*(allb[bi+1] - b) if bi + 1 < len(allb) else 0
        if bi == 0: budget = b0bud
        cnt = 0
        while nxt_issue <= min(lim, 22) and cnt < budget:
            issue_step(nxt_issue); nxt_issue += 1; cnt += 1
        if nxt_issue == 23 and b - 2 >= 18:
            issue_wo(); nxt_issue = 24
    stamp()
    stamp_store()
    a("s_endpgm")
    ld_L = a.L
    a.L = main_L[:LOADER_MARK] + ld_L + main_L[LOADER_MARK:]
    return wrap(a.text(), 250, 512, LDS_TOTAL, 256)

if __name__ == "__main__":
    out = sys.argv[1]
    kw = {}
    for arg in sys.argv[2:]:
        k, _, v = arg.partition("=")
        if v == "": kw[k] = True
        elif k in ("bint", "pre", "nfirst", "b0bud", "wpf", "slp0", "spf"): kw[k] = int(v)
        elif v in ("0", "1"): kw[k] = bool(int(v))
        else: kw[k] = v.replace("+", " ") if v != "none" else ""
    open(out, "w").write(gen(**kw))
```
